```python
import torch

def _softmax(x, axis=-1):
    return torch.softmax(x, dim=axis)
def _gelu(x):
    return torch.nn.functional.gelu(x, approximate="tanh")
def _silu(x):
    return torch.nn.functional.silu(x)
def _sigmoid(x):
    return torch.sigmoid(x)
def _layernorm(x, axis=-1, eps=1e-5):
    m = x.mean(dim=axis, keepdim=True)
    v = x.var(dim=axis, keepdim=True, unbiased=False)
    return (x - m) / torch.sqrt(v + eps)
def _scatter_add(tgt, idx, src, axis=0):
    return tgt.clone().index_add_(axis, idx, src)
def _segment_sum(src, seg, n):
    out = torch.zeros((n,) + src.shape[1:], dtype=src.dtype)
    return out.index_add_(0, seg, src)
def _pad(x, pw):
    flat = tuple(v for pair in reversed(pw) for v in pair)
    return torch.nn.functional.pad(x, flat)

kernel_name = 'standalone__w4a16_gemm_dequant__prompt'

def setup_inputs():

    _w = (lambda a: (lambda t: t.to(torch.bfloat16) if t.is_floating_point() else t)(torch.as_tensor(a)))
    B, S, D, F = 1, 2048, 576, 4608
    G = -1 if -1 > 0 else D
    D = (D // G) * G
    ng = D // G
    qw = torch.randint(0, 16, (D, F)).to(torch.int32)
    return {
        "x": _w((lambda *s: torch.randn(*s, dtype=torch.bfloat16) * 0.05)(B, S, D)),
        "qw": _w(qw),
        "scales": _w(torch.abs((lambda *s: torch.randn(*s, dtype=torch.bfloat16) * 0.05)(ng, F)) + 0.01),
        "zeros": _w(torch.full((ng, F), 8.0, dtype=float)),
    }

def reference(x, qw, scales, zeros):
    B, S, D = x.shape
    ng, F = scales.shape
    G = D // ng
    s = (lambda x, n, axis: torch.repeat_interleave(x, n, dim=axis))(scales, G, axis=0)
    z = (lambda x, n, axis: torch.repeat_interleave(x, n, dim=axis))(zeros, G, axis=0)
    w = ((lambda x, dt: x.to(dt))(qw, x.dtype) - z) * s
    return x @ w
```

```python
import sys, argparse
KN="standalone__w4a16_gemm_dequant__prompt_kernel"
XROW=1152; QROW=18432; OROW=9216

class Asm:
    def __init__(s): s.l=[]
    def __call__(s, t): s.l.append("    "+t)
    def label(s,t): s.l.append(t+":")
    def c(s,t): s.l.append("    ; "+t)
    def text(s): return "\n".join(s.l)+"\n"

def gen(xmap="B", stmod="sc1", nraw=6, stamps=False, warm=False, prio_c=0, prio_p=0):
    a=Asm()
    LDS_B=0; STG=12288; LDS_A=3*STG; AW=7*4096; LDS_FLAG=LDS_A+4*AW
    LDS_TOTAL=LDS_FLAG+64
    a(f"s_cmp_ge_u32 s2, 256")
    a("s_cbranch_scc1 L_done")
    if stamps:
        a("s_memrealtime s[90:91]")
        a("s_load_dwordx2 s[92:93], s[0:1], 48")
    a("s_load_dwordx4 s[4:7], s[0:1], 0")
    a("s_load_dwordx4 s[8:11], s[0:1], 16")
    a("s_load_dwordx2 s[12:13], s[0:1], 32")
    a("v_lshrrev_b32 v1, 6, v0")
    a("v_and_b32 v2, 63, v0")
    a("v_readfirstlane_b32 s40, v1")
    a("s_and_b32 s28, s2, 7")
    a("s_lshr_b32 s29, s2, 3")
    if xmap=="A":
        a("s_and_b32 s31, s29, 1"); a("s_lshl_b32 s28, s28, 1"); a("s_add_u32 s31, s31, s28"); a("s_lshr_b32 s30, s29, 1")
    elif xmap=="B":
        a("s_and_b32 s30, s29, 7"); a("s_and_b32 s33, s28, 1"); a("s_lshl_b32 s33, s33, 3"); a("s_add_u32 s30, s30, s33")
        a("s_lshr_b32 s31, s29, 3"); a("s_lshr_b32 s33, s28, 1"); a("s_lshl_b32 s33, s33, 2"); a("s_add_u32 s31, s31, s33")
    elif xmap=="C":
        a("s_and_b32 s30, s29, 3"); a("s_and_b32 s33, s28, 3"); a("s_lshl_b32 s33, s33, 2"); a("s_add_u32 s30, s30, s33")
        a("s_lshr_b32 s31, s29, 2"); a("s_lshr_b32 s33, s28, 2"); a("s_lshl_b32 s33, s33, 3"); a("s_add_u32 s31, s31, s33")
    a("s_and_b32 s32, s31, 1")
    a("s_lshl_b32 s33, s32, 5")
    a("s_mul_i32 s34, s31, 288")
    a("s_add_u32 s35, s34, s33")
    a("s_xor_b32 s36, s32, 1")
    a("s_lshl_b32 s36, s36, 8")
    a("s_add_u32 s36, s34, s36")
    a("s_waitcnt lgkmcnt(0)")
    for (d,p,sz) in ((16,4,2359296),(20,6,10616832),(24,12,18874368),(44,8,9216),(48,10,9216)):
        a(f"s_mov_b32 s{d}, s{p}"); a(f"s_mov_b32 s{d+1}, s{p+1}"); a(f"s_mov_b32 s{d+2}, {sz}"); a(f"s_mov_b32 s{d+3}, 0x20000")
    a("s_cmp_ge_u32 s40, 4")
    a("s_cbranch_scc1 L_prod")

    RING=16; NR=6; ACC=40; AREG=104
    if prio_c: a(f"s_setprio {prio_c}")
    a("v_lshrrev_b32 v3, 3, v2")
    a("v_and_b32 v4, 7, v2")
    a("v_lshrrev_b32 v5, 1, v3")
    a("v_xor_b32 v6, v4, v5")
    a("v_xor_b32 v7, 4, v6")
    a("v_lshlrev_b32 v6, 4, v6")
    a("v_lshlrev_b32 v7, 4, v7")
    a("v_lshlrev_b32 v8, 5, v1")
    a("v_add_u32 v8, v8, v3")
    a(f"v_mul_u32_u24 v8, {XROW}, v8")
    a("v_add_u32 v6, v6, v8")
    a("v_add_u32 v7, v7, v8")
    a(f"s_mul_i32 s41, s40, {AW}")
    a(f"s_add_u32 s41, s41, {LDS_A}")
    a(f"s_mul_i32 s42, s30, {128*XROW}")
    def dma_chunk(c,slot):
        for i in range(4):
            a(f"s_add_u32 m0, s41, {slot*4096+i*1024}")
            a(f"s_add_u32 s43, s42, {i*8*XROW+c*128}")
            a(f"buffer_load_dwordx4 v{6+(i&1)}, s[16:19], s43 offen lds")
    for c in range(7): dma_chunk(c,c)
    a("v_and_b32 v3, 31, v2")
    a("v_lshrrev_b32 v4, 5, v2")
    a("v_lshrrev_b32 v5, 1, v3")
    a("v_and_b32 v5, 7, v5")
    a("v_lshlrev_b32 v12, 7, v3")
    a("v_add_u32 v12, s41, v12")
    for q in range(4):
        a(f"v_add_u32 v13, {2*q}, v4")
        a("v_xor_b32 v13, v13, v5")
        a("v_lshlrev_b32 v13, 4, v13")
        a(f"v_add_u32 v{8+q}, v12, v13")
    a("v_lshlrev_b32 v14, 4, v2")
    a("v_lshlrev_b32 v5, 5, v1")
    a("v_lshl_add_u32 v5, v4, 2, v5")
    a(f"v_mul_u32_u24 v5, {OROW}, v5")
    a(f"s_mul_i32 s43, s30, {128*OROW}")
    a("v_add_u32 v5, s43, v5")
    a("v_and_b32 v12, 15, v2")
    a("v_lshlrev_b32 v12, 3, v12")
    a("v_bfe_u32 v13, v2, 4, 1")
    a("v_lshl_add_u32 v12, v13, 2, v12")
    a("v_add_u32 v12, v12, v5")
    a("s_lshl_b32 s43, s35, 1")
    a("v_add_u32 v12, s43, v12")
    a(f"v_mul_u32_u24 v13, {OROW}, v13")
    a("v_add_u32 v13, v13, v5")
    a("v_and_b32 v15, 7, v2")
    a("v_lshl_add_u32 v13, v15, 3, v13")
    a("v_bfe_u32 v15, v2, 3, 1")
    a("v_lshl_add_u32 v13, v15, 2, v13")
    a("s_lshl_b32 s43, s36, 1")
    a("v_add_u32 v13, s43, v13")
    for r in range(16):
        a(f"s_mov_b32 s{52+r}, {(8*(r>>2)+(r&3))*OROW}")
    issued=28
    for c in range(9):
        a(f"s_waitcnt vmcnt({issued-4*(c+1)})")
        slot=c if c<7 else c-7
        for q in range(4):
            r=AREG+4*(4*c+q)
            a(f"ds_read_b128 v[{r}:{r+3}], v{8+q} offset:{slot*4096}")
        if c<2:
            a("s_waitcnt lgkmcnt(0)")
            dma_chunk(7+c,c); issued+=4
    a("s_waitcnt lgkmcnt(0)")
    ops=[]
    n=0
    for P in range(4):
        for t in range(6):
            for ks in range(6):
                for tile in range(2):
                    ops.append(dict(n=n,f=2*ks+tile,k=6*t+ks,acc=ACC+32*(P&1)+16*tile,first=(t==0 and ks==0),P=P,last=(t==5 and ks==5 and tile==1)))
            n+=1
    for t in range(3):
        for ks in range(12):
            ops.append(dict(n=n,f=ks,k=12*t+ks,acc=ACC,first=(t==0 and ks==0),P=4,last=(t==2 and ks==11)))
        n+=1
    D=4
    pend=[]
    def epi64(P):
        base=ACC+32*(P&1)
        L=[]
        for r in range(16):
            L.append(f"v_cvt_pk_bf16_f32 v{base+r}, v{base+r}, v{base+16+r}")
            L.append(f"buffer_store_dword v{base+r}, v12, s[24:27], s{52+r} offen offset:{P*128} {stmod}")
        return L
    nops=len(ops)
    since_last=None
    for i in range(nops+D):
        if i<nops:
            o=ops[i]
            if o['f']==0: a("s_barrier")
            r=RING+4*(i%NR)
            a(f"ds_read_b128 v[{r}:{r+3}], v14 offset:{LDS_B+(o['n']%3)*STG+o['f']*1024}")
        j=i-D
        if j>=0:
            o=ops[j]
            r=RING+4*(j%NR)
            younger=min(nops-1,i)-j
            a(f"s_waitcnt lgkmcnt({younger})")
            A=AREG+4*o['k']; C=o['acc']
            src = "0" if o['first'] else f"v[{C}:{C+15}]"
            a(f"v_mfma_f32_32x32x16_bf16 v[{C}:{C+15}], v[{A}:{A+3}], v[{r}:{r+3}], {src}")
            if since_last is not None:
                since_last+=1
                if since_last>=5 and pend:
                    for _ in range(2):
                        if pend: a(pend.pop(0))
            if o['last'] and o['P']<4:
                assert not pend
                pend=epi64(o['P']); since_last=0
    assert not pend
    a("s_nop 7"); a("s_nop 7")
    for r in range(0,16,2):
        a(f"v_permlane16_swap_b32 v{ACC+r}, v{ACC+r+1}")
    a("s_nop 1")
    for r in range(0,16,2):
        a(f"v_cvt_pk_bf16_f32 v{ACC+r}, v{ACC+r}, v{ACC+r+1}")
        a(f"buffer_store_dword v{ACC+r}, v13, s[24:27], s{52+r} offen {stmod}")
    a("s_branch L_fin")

    a.label("L_prod")
    a("s_cmp_ge_u32 s40, 7")
    a("s_cbranch_scc1 L_w7")
    if prio_p: a(f"s_setprio {prio_p}")
    VOFF=8; CR=16; CS=36; OUT=44; ORA=52; RAW=256-32*nraw
    assert RAW>=56
    a("s_sub_u32 s41, s40, 4")
    a("v_and_b32 v3, 15, v2")
    a("v_lshrrev_b32 v4, 4, v2")
    a("v_and_b32 v5, 7, v2")
    a("v_lshrrev_b32 v6, 3, v2")
    a("v_lshlrev_b32 v7, 3, v3")
    a("s_lshl_b32 s42, s35, 1")
    for P in range(4):
        a(f"buffer_load_dwordx2 v[{CR+4*P}:{CR+4*P+1}], v7, s[44:47], s42 offen offset:{P*128}")
        a(f"buffer_load_dwordx2 v[{CR+4*P+2}:{CR+4*P+3}], v7, s[48:51], s42 offen offset:{P*128}")
    a("v_lshlrev_b32 v7, 3, v5")
    a("s_lshl_b32 s42, s36, 1")
    a(f"buffer_load_dwordx2 v[{CR+16}:{CR+17}], v7, s[44:47], s42 offen")
    a(f"buffer_load_dwordx2 v[{CR+18}:{CR+19}], v7, s[48:51], s42 offen")
    a("s_lshl_b32 s42, s41, 5")
    a("v_lshl_add_u32 v7, v4, 3, s42")
    a(f"v_mul_u32_u24 v7, {QROW}, v7")
    a("v_lshl_add_u32 v7, v3, 4, v7")
    a(f"v_mov_b32 v{VOFF}, v7")
    for j in range(1,8):
        a(f"v_add_u32 v{VOFF+j}, {j*QROW}, v7")
    a("s_lshl_b32 s43, s35, 2")
    a("s_lshl_b32 s39, s36, 2")
    def loads(b):
        base=RAW+32*(b%nraw)
        if b<24:
            P=b//6; t=b%6
            a(f"s_add_u32 s42, s43, {P*256+96*t*QROW}")
        else:
            t=b-24
            if b==24:
                a("s_lshl_b32 s42, s41, 6")
                a("v_lshl_add_u32 v7, v6, 3, s42")
                a(f"v_mul_u32_u24 v7, {QROW}, v7")
                a("v_lshl_add_u32 v7, v5, 4, v7")
                a(f"v_mov_b32 v{VOFF}, v7")
                for j in range(1,8):
                    a(f"v_add_u32 v{VOFF+j}, {j*QROW}, v7")
            a(f"s_add_u32 s42, s39, {192*t*QROW}")
        for j in range(8):
            a(f"buffer_load_dwordx4 v[{base+4*j}:{base+4*j+3}], v{VOFF+j}, s[20:23], s42 offen")
    for b in range(nraw): loads(b)
    a("s_lshl_b32 s42, s41, 12")
    a("v_lshrrev_b32 v7, 1, v4")
    a("v_lshlrev_b32 v53, 11, v7")
    a("v_and_b32 v7, 1, v4")
    a("v_lshl_add_u32 v53, v7, 9, v53")
    a("v_lshl_add_u32 v53, v3, 4, v53")
    a("v_add_u32 v53, s42, v53")
    a("v_lshrrev_b32 v7, 1, v6")
    a("v_lshlrev_b32 v54, 10, v7")
    a("v_and_b32 v7, 1, v6")
    a("v_lshl_add_u32 v54, v7, 9, v54")
    a("v_lshl_add_u32 v54, v5, 4, v54")
    a("v_add_u32 v54, s42, v54")
    a(f"v_mov_b32 v{ORA}, 0")
    a("s_mov_b32 s37, 0x4b800000")
    a("s_mov_b32 s38, 0xffff0000")
    def consts(P):
        for e in range(4):
            sr=CR+4*P+(e>>1); zr=CR+4*P+2+(e>>1)
            if e&1:
                a(f"v_and_b32 v{CS+e}, s38, v{sr}")
                a(f"v_and_b32 v7, s38, v{zr}")
            else:
                a(f"v_lshlrev_b32 v{CS+e}, 16, v{sr}")
                a(f"v_lshlrev_b32 v7, 16, v{zr}")
            a(f"v_mul_f32 v{CS+4+e}, v7, v{CS+e}")
            a(f"v_xor_b32 v{CS+4+e}, 0x80000000, v{CS+4+e}")
            a(f"v_mul_f32 v{CS+e}, s37, v{CS+e}")
    for n in range(27):
        if n%6==0:
            if n==0: a(f"s_waitcnt vmcnt({8*nraw})")
            consts(n//6)
        younger=8*(min(n+nraw-1,26)-n)
        a(f"s_waitcnt vmcnt({younger})")
        base=RAW+32*(n%nraw)
        buf=LDS_B+(n%3)*STG
        for e in range(4):
            ob=OUT+4*(e&1)
            for jp in range(4):
                r0=base+4*(2*jp)+e; r1=base+4*(2*jp+1)+e
                a(f"v_or3_b32 v{ORA}, v{ORA}, v{r0}, v{r1}")
                a(f"v_fma_mix_f32 v{r0}, v{r0}, v{CS+e}, v{CS+4+e} op_sel_hi:[1,0,0]")
                a(f"v_fma_mix_f32 v{r1}, v{r1}, v{CS+e}, v{CS+4+e} op_sel_hi:[1,0,0]")
                a(f"v_cvt_pk_bf16_f32 v{ob+jp}, v{r0}, v{r1}")
            if n<24:
                a(f"ds_write_b128 v53, v[{ob}:{ob+3}] offset:{buf+(e&1)*1024+(e>>1)*256}")
            else:
                a(f"ds_write_b128 v54, v[{ob}:{ob+3}] offset:{buf+(e>>1)*128+(e&1)*256}")
        if n+nraw<=26: loads(n+nraw)
        a("s_waitcnt lgkmcnt(0)")
        a("s_barrier")
    a("s_branch L_done")
    a.label("L_w7")
    a("s_branch L_done")
    a.label("L_fin")
    if stamps:
        a("s_cmp_lg_u32 s40, 0"); a("s_cbranch_scc1 L_done")
        a("s_waitcnt vmcnt(0)")
        a("s_memrealtime s[96:97]")
        a("s_mov_b32 s94, 65536"); a("s_mov_b32 s95, 0x20000")
        a("s_waitcnt lgkmcnt(0)")
        a("v_mov_b32 v10, s90"); a("v_mov_b32 v11, s91"); a("v_mov_b32 v12, s96"); a("v_mov_b32 v13, s97")
        a("s_lshl_b32 s98, s2, 5"); a("v_mov_b32 v14, 0")
        a("buffer_store_dwordx4 v[10:13], v14, s[92:95], s98 offen")
    a.label("L_done")
    body=a.text()
    return f"""; W4A16 GEMM (dequant fused). Generated by gen.py
; @launch grid=(256,1,1) block=(512,1,1) lds={LDS_TOTAL}
.amdgcn_target "amdgcn-amd-amdhsa--gfx950"
.text
.globl {KN}
.p2align 8
.type {KN},@function
{KN}:
{body}    s_endpgm
.section .rodata,"a"
.p2align 6
.amdhsa_kernel {KN}
  .amdhsa_next_free_vgpr 256
  .amdhsa_next_free_sgpr 102
  .amdhsa_accum_offset 256
  .amdhsa_group_segment_fixed_size 0
  .amdhsa_kernarg_size 56
  .amdhsa_user_sgpr_count 2
  .amdhsa_user_sgpr_kernarg_segment_ptr 1
  .amdhsa_system_sgpr_workgroup_id_x 1
.end_amdhsa_kernel
""", LDS_TOTAL
if __name__=="__main__":
    ap=argparse.ArgumentParser()
    ap.add_argument("out"); ap.add_argument("--xmap",default="B"); ap.add_argument("--stmod",default="sc1")
    ap.add_argument("--nraw",type=int,default=6); ap.add_argument("--stamps",action="store_true")
    ap.add_argument("--prio_c",type=int,default=0); ap.add_argument("--prio_p",type=int,default=0)
    x=ap.parse_args()
    t,l=gen(x.xmap,x.stmod if x.stmod!="none" else "",x.nraw,x.stamps,prio_c=x.prio_c,prio_p=x.prio_p)
    open(x.out,"w").write(t); print("lds",l)
```

```python
import sys, argparse
KN="standalone__w4a16_gemm_dequant__prompt_kernel"
XROW=1152; QROW=18432; OROW=9216

class Asm:
    def __init__(s): s.l=[]
    def __call__(s, t): s.l.append("    "+t)
    def label(s,t): s.l.append(t+":")
    def text(s): return "\n".join(s.l)+"\n"

def gen(o):
    a=Asm()
    PA=o.pa; stmod=o.stmod if o.stmod!="none" else ""
    D=o.depth; NR=6; TR=o.tr
    PB=36864; LDS_T=0; LDS_F=2304; LDS_B=2560; LDS_A=LDS_B+PB; AW=7*4096; LDS_TOTAL=LDS_A+4*AW
    def tstamp(v):
        if not o.trace: return
        a("s_memtime s[98:99]"); a("s_mov_b32 m0, s97"); a("s_waitcnt lgkmcnt(0)"); a(f"v_writelane_b32 v{v}, s98, m0"); a("s_add_u32 s97, s97, 1")
    def tdump(v):
        if not o.trace: return
        a("s_load_dwordx2 s[92:93], s[0:1], 48"); a("s_mov_b32 s94, 0x1000000"); a("s_mov_b32 s95, 0x20000"); a("s_waitcnt lgkmcnt(0)")
        a("s_lshl_b32 s98, s2, 3"); a("s_add_u32 s98, s98, s40"); a("s_lshl_b32 s98, s98, 8"); a("s_add_u32 s98, s98, 65536")
        a("v_lshlrev_b32 v4, 2, v2")
        a(f"v_writelane_b32 v{v}, s88, 59")
        a(f"buffer_store_dword v{v}, v4, s[92:95], s98 offen")
    def align(n=6):
        if n: a.l.append(f"    .p2align {n}")
    a("s_cmp_ge_u32 s2, 256")
    a("s_cbranch_scc1 L_done")
    if o.stamps:
        a("s_memrealtime s[90:91]")
        a("s_memtime s[88:89]")
    a("s_load_dwordx2 s[16:17], s[0:1], 0")
    a("s_load_dwordx2 s[20:21], s[0:1], 8")
    a("s_load_dwordx2 s[44:45], s[0:1], 16")
    a("s_load_dwordx2 s[48:49], s[0:1], 24")
    a("s_load_dwordx2 s[24:25], s[0:1], 32")
    a("v_lshrrev_b32 v1, 6, v0")
    a("v_and_b32 v2, 63, v0")
    a("v_readfirstlane_b32 s40, v1")
    if o.trace: a("s_mov_b32 s97, 0")
    a("s_and_b32 s28, s2, 7")
    a("s_lshr_b32 s29, s2, 3")
    if o.xmap=="A":
        a("s_and_b32 s31, s29, 1"); a("s_lshl_b32 s28, s28, 1"); a("s_add_u32 s31, s31, s28"); a("s_lshr_b32 s30, s29, 1")
        a("s_mul_i32 s32, s30, 9"); a("s_lshr_b32 s32, s32, 4")
    elif o.xmap=="B":
        a("s_and_b32 s32, s29, 7"); a("s_and_b32 s33, s28, 1"); a("s_lshl_b32 s33, s33, 3"); a("s_add_u32 s30, s32, s33")
        a("s_lshr_b32 s31, s29, 3"); a("s_lshr_b32 s33, s28, 1"); a("s_lshl_b32 s33, s33, 2"); a("s_add_u32 s31, s31, s33")
    elif o.xmap=="C":
        a("s_and_b32 s32, s29, 3"); a("s_and_b32 s33, s28, 3"); a("s_lshl_b32 s33, s33, 2"); a("s_add_u32 s30, s32, s33")
        a("s_lshr_b32 s31, s29, 2"); a("s_lshr_b32 s33, s28, 2"); a("s_lshl_b32 s33, s33, 3"); a("s_add_u32 s31, s31, s33")
        a("s_lshl_b32 s32, s32, 1")
    if o.rot=="p": a("s_mov_b32 s33, 0")
    elif o.rot=="k": a("s_mov_b32 s33, s32"); a("s_mov_b32 s32, 0")
    elif o.rot=="n": a("s_mov_b32 s33, 0"); a("s_mov_b32 s32, 0")
    elif o.rot=="pk": a("s_mov_b32 s33, s32")
    a("s_mul_i32 s34, s31, 288")
    for (d,sz) in ((16,2359296),(20,10616832),(24,0),(44,9216),(48,9216)):
        a(f"s_mov_b32 s{d+2}, {sz}"); a(f"s_mov_b32 s{d+3}, 0x20000")
    a("s_cmp_ge_u32 s40, 4")
    a("s_cbranch_scc1 L_prod")

    RING=16; ACA=40; ACB=56; E=72; AREG=88
    if o.prio_c: a(f"s_setprio {o.prio_c}")
    a("v_min_u32 v3, 17, v2")
    a("v_mad_u32_u24 v12, v1, 18, v3")
    a("v_lshlrev_b32 v13, 3, v12")
    a("s_lshl_b32 s43, s34, 1")
    a("v_lshrrev_b32 v3, 3, v2")
    a("v_and_b32 v4, 7, v2")
    a("v_lshrrev_b32 v5, 1, v3")
    a("v_xor_b32 v6, v4, v5")
    a("v_xor_b32 v7, 4, v6")
    a("v_lshl_add_u32 v8, v1, 5, v3")
    a(f"v_mul_u32_u24 v8, {XROW}, v8")
    a("v_lshl_add_u32 v6, v6, 4, v8")
    a("v_lshl_add_u32 v7, v7, 4, v8")
    a(f"v_add_u32 v7, {8*XROW-1024}, v7")
    a(f"v_add_u32 v8, {16*XROW-2048}, v6")
    a(f"v_add_u32 v9, {16*XROW-2048}, v7")
    a(f"s_mul_i32 s41, s40, {AW}")
    a(f"s_add_u32 s41, s41, {LDS_A}")
    a(f"s_mul_i32 s35, s30, {128*XROW}")
    a("s_lshl_b32 s42, s33, 7")
    a("s_add_u32 s42, s42, s35")
    a("s_add_u32 s36, s35, 1152")
    a("s_mov_b32 m0, s41")
    a("s_waitcnt lgkmcnt(0)")
    a("buffer_load_dwordx2 v[16:17], v13, s[44:47], s43 offen")
    a("buffer_load_dwordx2 v[18:19], v13, s[48:51], s43 offen")
    a("s_mov_b32 s43, 7")
    def advA():
        a("s_add_u32 s42, s42, 128"); a("s_cmp_eq_u32 s42, s36"); a("s_cselect_b32 s42, s35, s42")
    a.label("L_adma")
    for i in range(4):
        a(f"buffer_load_dwordx4 v{6+i}, s[16:19], s42 offen offset:{i*1024} lds")
    a("s_add_u32 m0, m0, 4096")
    advA()
    a("s_sub_u32 s43, s43, 1")
    a("s_cmp_lg_u32 s43, 0")
    a("s_cbranch_scc1 L_adma")
    a("v_lshlrev_b32 v12, 5, v12")
    a("s_mov_b32 s37, 0x4b800000")
    a("s_mov_b32 s38, 0xffff0000")
    a("s_waitcnt vmcnt(28)")
    S=20; Z=24; T=28
    for e in range(4):
        sr=16+(e>>1); zr=18+(e>>1)
        if e&1:
            a(f"v_and_b32 v{S+e}, s38, v{sr}"); a(f"v_and_b32 v{Z+e}, s38, v{zr}")
        else:
            a(f"v_lshlrev_b32 v{S+e}, 16, v{sr}"); a(f"v_lshlrev_b32 v{Z+e}, 16, v{zr}")
        a(f"v_mul_f32 v{T+4+e}, -v{Z+e}, v{S+e}")
        a(f"v_mul_f32 v{T+e}, s37, v{S+e}")
    a(f"ds_write_b128 v12, v[{T}:{T+3}] offset:{LDS_T}")
    a(f"ds_write_b128 v12, v[{T+4}:{T+7}] offset:{LDS_T+16}")
    a("s_waitcnt lgkmcnt(0)")
    a("s_barrier ;keep")
    tstamp(3)
    a("s_mov_b64 s[56:57], 0")
    a("s_mov_b32 s52, 0x41000000")
    a("s_mov_b32 s53, 0x41800000")
    a("s_mov_b32 s54, 0x0dffffff")
    a("s_mov_b32 s55, 0x7fffffff")
    a("s_mov_b32 s58, 0x71800000")
    for i in range(4):
        a(f"v_mul_f32 v10, s52, v{Z+i}")
        a("v_rndne_f32 v11, v10")
        a("v_cmp_neq_f32 vcc, v10, v11")
        a("s_or_b64 s[56:57], s[56:57], vcc")
        a(f"v_cmp_nle_f32 vcc, |v{Z+i}|, s53")
        a("s_or_b64 s[56:57], s[56:57], vcc")
        a(f"v_and_b32 v10, s55, v{Z+i}")
        a("v_add_u32 v10, -1, v10")
        a("v_cmp_gt_u32 vcc, s54, v10")
        a("s_or_b64 s[56:57], s[56:57], vcc")
        a(f"v_and_b32 v10, s55, v{S+i}")
        a("v_cmp_le_u32 vcc, s58, v10")
        a("s_or_b64 s[56:57], s[56:57], vcc")
        a("v_add_u32 v10, -1, v10")
        a("v_cmp_gt_u32 vcc, s54, v10")
        a("s_or_b64 s[56:57], s[56:57], vcc")
    a("s_cmp_lg_u64 s[56:57], 0")
    a("s_cselect_b32 s43, 1, 0")
    a("v_lshlrev_b32 v11, 2, v1"); a("v_mov_b32 v10, s43")
    a(f"ds_write_b32 v11, v10 offset:{LDS_F}")
    a("v_and_b32 v16, 31, v2")
    a("v_lshrrev_b32 v4, 5, v2")
    a("v_bfe_u32 v5, v16, 1, 3")
    a("v_lshlrev_b32 v14, 7, v16")
    a("v_add_u32 v14, s41, v14")
    for q in range(4):
        a(f"v_add_u32 v15, {2*q}, v4")
        a("v_xor_b32 v15, v15, v5")
        a(f"v_lshl_add_u32 v{10+q}, v15, 4, v14")
    a(f"s_mul_i32 s43, s30, {128*OROW}")
    a("s_lshl_b32 s61, s34, 1")
    a("s_add_u32 s43, s43, s61")
    if TR:
        a("v_and_b32 v5, 1, v2")
        a("v_mul_u32_u24 v14, 17, v5")
        a("v_bfe_u32 v15, v2, 3, 1")
        a("v_xor_b32 v14, v14, v15")
        a("v_bfe_u32 v15, v2, 1, 1")
        a("v_lshl_add_u32 v14, v15, 3, v14")
        a("v_bfe_u32 v15, v2, 2, 1")
        a("v_lshl_add_u32 v14, v15, 1, v14")
        a("v_bfe_u32 v15, v2, 4, 1")
        a("v_lshl_add_u32 v14, v15, 2, v14")
        a("v_lshl_add_u32 v14, v4, 5, v14")
        a("v_lshlrev_b32 v14, 4, v14")
        a("v_lshl_add_u32 v5, v1, 5, v16")
        a(f"v_mul_u32_u24 v5, {OROW}, v5")
        a("v_add_u32 v5, s43, v5")
        a("v_lshl_add_u32 v15, v4, 4, v5")
    else:
        a("v_lshlrev_b32 v14, 4, v2")
        a("v_lshlrev_b32 v5, 5, v1")
        a("v_lshl_add_u32 v5, v4, 2, v5")
        a("v_bfe_u32 v15, v2, 4, 1")
        a("v_add_u32 v5, v5, v15")
        a(f"v_mul_u32_u24 v5, {OROW}, v5")
        a("v_add_u32 v5, s43, v5")
        a("v_and_b32 v15, 7, v2")
        a("v_lshl_add_u32 v5, v15, 3, v5")
        a("v_bfe_u32 v15, v2, 3, 1")
        a("v_lshl_add_u32 v15, v15, 2, v5")
        for r in range(8):
            rr=2*r
            a(f"s_mov_b32 s{52+r}, {(8*(rr>>2)+(rr&3))*OROW}")
    a(f"s_mov_b32 s60, {PB}")
    a("s_lshl_b32 s61, s32, 6")
    a("s_sub_u32 s61, s61, 64")
    a("s_mov_b32 s62, 9")
    issued=28
    for c in range(9):
        a(f"s_waitcnt vmcnt({issued-4*(c+1)})")
        slot=c if c<7 else c-7
        for q in range(4):
            r=AREG+4*(4*c+q)
            a(f"ds_read_b128 v[{r}:{r+3}], v{10+q} offset:{slot*4096}")
        if c<2:
            a(f"s_add_u32 m0, s41, {c*4096}")
            a("s_waitcnt lgkmcnt(0)")
            for i in range(4):
                a(f"buffer_load_dwordx4 v{6+i}, s[16:19], s42 offen offset:{i*1024} lds")
            if c==0: advA()
            issued+=4
    a("s_waitcnt lgkmcnt(0)")
    tstamp(3)
    a("s_barrier")
    def rd(j):
        j%=36
        r=RING+4*(j%NR)
        a(f"ds_read_b128 v[{r}:{r+3}], v14 offset:{LDS_B+j*1024}")
    for j in range(D): rd(j)
    def epi_list():
        L=[]
        if TR:
            for g in range(2):
                for i in range(4):
                    L.append(f"v_cvt_pk_bf16_f32 v{E+4*g+i}, v{ACB+8*g+2*i}, v{ACB+8*g+2*i+1}")
                L.append(f"buffer_store_dwordx4 v[{E+4*g}:{E+4*g+3}], v5, s[24:27], 0 offen offset:{32*g} {stmod}")
        else:
            for r in range(0,16,2): L.append(f"v_permlane16_swap_b32 v{ACB+r}, v{ACB+r+1}")
            L.append("s_nop 0")
            for r in range(0,16,2):
                L.append(f"v_cvt_pk_bf16_f32 v{E+r//2}, v{ACB+r}, v{ACB+r+1}")
                L.append(f"buffer_store_dword v{E+r//2}, v5, s[24:27], s{52+r//2} offen {stmod}")
        return L
    align(o.align)
    a.label("L_cloop")
    pend=["v_add_u32 v5, s61, v15","s_add_u32 s61, s61, 64","s_cmp_eq_u32 s61, 576","s_cselect_b32 s61, 0, s61"]
    for j in range(36):
        if j+D==16:
            tstamp(3); a("s_barrier"); tstamp(3)
        if j+D==36:
            a("v_add_u32 v14, s60, v14"); a("s_sub_u32 s60, 0, s60")
            tstamp(3); a("s_barrier"); tstamp(3)
        rd(j+D)
        a(f"s_waitcnt lgkmcnt({D})")
        r=RING+4*(j%NR); A=AREG+4*j; C=ACA if j<18 else ACB
        src="0" if j==0 else f"v[{ACA}:{ACA+15}]" if j<=18 else f"v[{ACB}:{ACB+15}]"
        if TR: a(f"v_mfma_f32_32x32x16_bf16 v[{C}:{C+15}], v[{r}:{r+3}], v[{A}:{A+3}], {src}")
        else:  a(f"v_mfma_f32_32x32x16_bf16 v[{C}:{C+15}], v[{A}:{A+3}], v[{r}:{r+3}], {src}")
        if j==3: pend+=epi_list()+["s_mov_b32 s26, 18874368","s_sub_u32 s62, s62, 1"]
        for _ in range(o.nf):
            if pend: a(pend.pop(0))
        if j==17: assert not pend
    assert not pend
    a("s_cmp_lg_u32 s62, 0")
    a("s_cbranch_scc1 L_cloop")
    a.label("L_ctail")
    a("v_add_u32 v5, s61, v15")
    a("v_mov_b32 v4, 0")
    a(f"ds_read_b128 v[8:11], v4 offset:{LDS_F}")
    a(f"ds_read_b128 v[16:19], v4 offset:{LDS_F+16}")
    a("s_nop 7")
    for t in epi_list(): a(t)
    tstamp(3); tdump(3)
    a("s_waitcnt lgkmcnt(0)")
    a("v_or3_b32 v8, v8, v9, v10")
    a("v_or3_b32 v8, v8, v11, v16")
    a("v_or3_b32 v8, v8, v17, v18")
    a("v_or_b32 v8, v8, v19")
    a("s_nop 0")
    a("v_readfirstlane_b32 s43, v8")
    a("s_cmp_lg_u32 s43, 0")
    if not o.abl: a("s_cbranch_scc1 L_slow")
    a.label("L_fin")
    if o.stamps:
        a("s_cmp_lg_u32 s40, 0"); a("s_cbranch_scc1 L_done")
        a("s_load_dwordx2 s[92:93], s[0:1], 48")
        a("s_waitcnt vmcnt(0)")
        a("s_memrealtime s[96:97]")
        a("s_memtime s[86:87]")
        a("s_mov_b32 s94, 65536"); a("s_mov_b32 s95, 0x20000")
        a("s_waitcnt lgkmcnt(0)")
        a("v_mov_b32 v10, s90"); a("v_mov_b32 v11, s91"); a("v_mov_b32 v12, s96"); a("v_mov_b32 v13, s97")
        a("s_lshl_b32 s98, s2, 5"); a("v_mov_b32 v14, 0")
        a("buffer_store_dwordx4 v[10:13], v14, s[92:95], s98 offen")
        a("s_sub_u32 s86, s86, s88"); a("s_subb_u32 s87, s87, s89")
        a("v_mov_b32 v10, s86"); a("v_mov_b32 v11, s87")
        a("buffer_store_dwordx2 v[10:11], v14, s[92:95], s98 offen offset:16")
    a("s_endpgm")

    a.label("L_prod")
    if o.prio_p: a(f"s_setprio {o.prio_p}")
    VOFF=8; VOFS=16; WAD=18; WS=20; TAD=22; TA2=23; ORA=24; CST=28; OUT=44; OUTS=60; RAW=64
    a("s_sub_u32 s41, s40, 4")
    a("v_and_b32 v5, 7, v2")
    a("v_lshrrev_b32 v6, 3, v2")
    a(f"v_mul_u32_u24 v7, {8*QROW}, v6")
    a(f"v_lshl_add_u32 v{VOFF}, v5, 4, v7")
    for j in range(1,8):
        a(f"v_add_u32 v{VOFF+j}, {j*QROW}, v{VOFF}")
    a("s_lshl_b32 s42, s41, 4")
    a("v_lshl_add_u32 v7, v6, 1, s42")
    a(f"v_mul_u32_u24 v7, {QROW}, v7")
    a(f"v_lshl_add_u32 v{VOFS}, v5, 4, v7")
    a(f"v_add_u32 v{VOFS+1}, {QROW}, v{VOFS}")
    for i,base in enumerate(("s41",4,8)):
        if i==0: a("s_add_u32 s52, s41, s33")
        elif i==1: a("s_add_u32 s53, s52, 4")
        else: a("s_add_u32 s54, s33, 8")
    for i in range(3):
        a(f"s_sub_u32 s42, s{52+i}, 9"); a(f"s_cmp_ge_u32 s{52+i}, 9"); a(f"s_cselect_b32 s{52+i}, s42, s{52+i}")
        a(f"s_mul_i32 s{52+i}, s{52+i}, {64*QROW}")
    a("s_lshl_b32 s39, s34, 2")
    for i in range(3): a(f"s_add_u32 s{52+i}, s{52+i}, s39")
    a("s_lshl_b32 s63, s32, 7")
    a("s_waitcnt lgkmcnt(0)")
    def adv():
        a("s_add_u32 s63, s63, 128"); a("s_cmp_eq_u32 s63, 1152"); a("s_cselect_b32 s63, 0, s63")
    def ld(ps,t,j,so):
        r=RAW+72*ps+32*t+4*j
        vo=VOFF+j if t<2 else VOFS+j
        a(f"buffer_load_dwordx4 v[{r}:{r+3}], v{vo}, s[20:23], {so} offen")
    for ps in range(PA):
        for t in range(3):
            a(f"s_add_u32 s42, s{52+t}, s63")
            for j in range(8 if t<2 else 2): ld(ps,t,j,"s42")
        adv()
    a("s_lshl_b32 s42, s41, 12")
    a(f"s_add_u32 s42, s42, {LDS_B}")
    a("v_lshrrev_b32 v7, 1, v6")
    a(f"v_lshlrev_b32 v{WAD}, 10, v7")
    a("v_and_b32 v7, 1, v6")
    a(f"v_lshl_add_u32 v{WAD}, v7, 9, v{WAD}")
    a(f"v_lshl_add_u32 v{WAD}, v5, 4, v{WAD}")
    a(f"v_add_u32 v{WAD}, s42, v{WAD}")
    a("s_lshl_b32 s42, s41, 10")
    a(f"s_add_u32 s42, s42, {LDS_B+32768}")
    a("v_lshrrev_b32 v7, 2, v6")
    a(f"v_lshlrev_b32 v{WS}, 9, v7")
    a("v_and_b32 v7, 3, v6")
    a(f"v_lshl_add_u32 v{WS}, v7, 2, v{WS}")
    a(f"v_lshl_add_u32 v{WS}, v5, 4, v{WS}")
    a(f"v_add_u32 v{WS}, s42, v{WS}")
    if TR:
        a(f"v_xor_b32 v{WAD+1}, 16, v{WAD}")
        a(f"v_xor_b32 v{WS+1}, 16, v{WS}")
    a(f"v_lshlrev_b32 v{TAD}, 5, v5")
    a(f"v_mov_b32 v{ORA}, 0"); a(f"v_mov_b32 v{ORA+1}, 0")
    a("s_lshl_b32 s61, s32, 8")
    a(f"v_add_u32 v{TA2}, s61, v{TAD}")
    a("s_mov_b32 s62, 9")
    a(f"s_mov_b32 s60, {PB}")
    a("s_barrier ;keep")
    a(f"ds_read_b128 v[{CST}:{CST+3}], v{TA2} offset:{LDS_T}")
    a(f"ds_read_b128 v[{CST+4}:{CST+7}], v{TA2} offset:{LDS_T+16}")
    a("s_waitcnt lgkmcnt(0)")
    tstamp(3)
    align(o.align)
    a.label("L_ploop")
    NL=18*PA
    for ps in range(2):
        rs=ps%PA
        CS=CST+8*ps; CC=CS+4; CN=CST+8*(1-ps)
        a(f"s_cmp_le_u32 s62, {PA}")
        a("s_cselect_b32 s22, 0, s22")
        a("s_add_u32 s61, s61, 256"); a("s_cmp_eq_u32 s61, 2304"); a("s_cselect_b32 s61, 0, s61")
        a(f"v_add_u32 v{TA2}, s61, v{TAD}")
        def grp(r0,r1,o_):
            for e in range(4):
                a(f"v_or3_b32 v{ORA+(e&1)}, v{ORA+(e&1)}, v{r0+e}, v{r1+e}")
                a(f"v_fma_mix_f32 v{r0+e}, v{r0+e}, v{CS+e}, v{CC+e} op_sel_hi:[1,0,0]")
                a(f"v_fma_mix_f32 v{r1+e}, v{r1+e}, v{CS+e}, v{CC+e} op_sel_hi:[1,0,0]")
                if e: a(f"v_cvt_pk_bf16_f32 v{o_(e-1)}, v{r0+e-1}, v{r1+e-1}")
            a(f"v_cvt_pk_bf16_f32 v{o_(3)}, v{r0+3}, v{r1+3}")
        for t in range(2):
            base=RAW+72*rs+32*t
            a(f"s_add_u32 s42, s{52+t}, s63")
            for jp in range(4):
                a(f"s_waitcnt vmcnt({NL-2})")
                if jp==0: tstamp(3)
                grp(base+8*jp,base+8*jp+4,lambda e:OUT+4*e+jp)
                if jp<3: ld(rs,t,2*jp,"s42"); ld(rs,t,2*jp+1,"s42")
                if jp==o.bpos:
                    if t==0:
                        a("s_cmp_eq_u32 s62, 9")
                        a(f"s_cbranch_scc1 L_skip{ps}")
                    a("s_waitcnt lgkmcnt(0)")
                    tstamp(3)
                    a("s_barrier")
                    if t==0:
                        a.label(f"L_skip{ps}")
                        a(f"ds_read_b128 v[{CN}:{CN+3}], v{TA2} offset:{LDS_T}")
                        a(f"ds_read_b128 v[{CN+4}:{CN+7}], v{TA2} offset:{LDS_T+16}")
            for e in range(4):
                wa=WAD+(e&1) if TR else WAD
                a(f"ds_write_b128 v{wa}, v[{OUT+4*e}:{OUT+4*e+3}] offset:{t*16384+(e>>1)*128+(e&1)*256}")
            ld(rs,t,6,"s42"); ld(rs,t,7,"s42")
        base=RAW+72*rs+64
        a("s_add_u32 s42, s54, s63")
        a(f"s_waitcnt vmcnt({NL-2})")
        grp(base,base+4,lambda e:OUTS+e)
        for e in range(4):
            wa=WS+(e&1) if TR else WS
            a(f"ds_write_b32 v{wa}, v{OUTS+e} offset:{(e>>1)*128+(e&1)*256}")
        ld(rs,2,0,"s42"); ld(rs,2,1,"s42")
        for w in ([WAD,WAD+1,WS,WS+1] if TR else [WAD,WS]):
            a(f"v_add_u32 v{w}, s60, v{w}")
        a("s_sub_u32 s60, 0, s60")
        adv()
        a("s_sub_u32 s62, s62, 1")
        a("s_cmp_lg_u32 s62, 0")
        if ps==0: a("s_cbranch_scc0 L_pdone")
        else: a("s_cbranch_scc1 L_ploop")
    a.label("L_pdone")
    a("s_waitcnt lgkmcnt(0)")
    a("s_barrier")
    a(f"v_or_b32 v{ORA}, v{ORA}, v{ORA+1}")
    a(f"v_cmp_lt_u32 vcc, 15, v{ORA}")
    a("s_lshl_b32 s42, s40, 2")
    a("s_cmp_lg_u64 vcc, 0")
    a("s_cselect_b32 s43, 1, 0")
    a("v_mov_b32 v7, s42"); a("v_mov_b32 v6, s43")
    a(f"ds_write_b32 v7, v6 offset:{LDS_F}")
    a("s_waitcnt lgkmcnt(0)")
    a("s_barrier")
    tdump(3)
    a("s_endpgm")

    a.label("L_slow")
    a("s_waitcnt vmcnt(0)")
    a("s_setreg_imm32_b32 hwreg(HW_REG_MODE, 4, 2), 3")
    a("v_and_b32 v3, 31, v2")
    a("v_lshrrev_b32 v4, 5, v2")
    a(f"v_mul_u32_u24 v5, {8*QROW}, v4")
    a("v_lshl_add_u32 v5, v3, 2, v5")
    a("v_lshlrev_b32 v6, 1, v3")
    a("v_lshlrev_b32 v7, 5, v1")
    a("v_lshl_add_u32 v7, v4, 2, v7")
    a(f"v_mul_u32_u24 v7, {OROW}, v7")
    a("v_add_u32 v7, v7, v6")
    a(f"s_mul_i32 s41, s30, {128*OROW}")
    a("v_add_u32 v7, s41, v7")
    a("s_mov_b32 s38, 0xffff0000")
    a("s_mov_b32 s62, 0")
    a.label("L_s1")
    a("s_lshl_b32 s41, s62, 5")
    a("s_add_u32 s41, s41, s34")
    a("s_lshl_b32 s42, s41, 1")
    a("buffer_load_ushort v8, v6, s[44:47], s42 offen")
    a("buffer_load_ushort v9, v6, s[48:51], s42 offen")
    a("s_lshl_b32 s35, s41, 2")
    a(f"s_add_u32 s36, s35, {576*QROW}")
    a(f"s_mul_i32 s43, s33, {64*QROW}")
    a("s_add_u32 s43, s43, s35")
    for r in range(16): a(f"v_mov_b32 v{ACA+r}, 0")
    a("s_waitcnt vmcnt(0)")
    a("v_lshlrev_b32 v8, 16, v8")
    a("v_lshlrev_b32 v9, 16, v9")
    a("s_mov_b32 s63, 0")
    a.label("L_s2")
    for j in range(8):
        a(f"s_add_u32 s61, s43, {j*QROW}")
        a(f"buffer_load_dword v{16+j}, v5, s[20:23], s61 offen")
    a(f"s_add_u32 s43, s43, {16*QROW}")
    a("s_cmp_eq_u32 s43, s36")
    a("s_cselect_b32 s43, s35, s43")
    a("s_set_gpr_idx_on s63, gpr_idx(SRC0)")
    for i in range(4): a(f"v_mov_b32 v{28+i}, v{AREG+i}")
    a("s_set_gpr_idx_off")
    a("s_waitcnt vmcnt(0)")
    for jp in range(4):
        x=16+2*jp; y=x+1
        a(f"v_cvt_f32_i32 v{x}, v{x}"); a(f"v_cvt_f32_i32 v{y}, v{y}")
        a(f"v_cvt_pk_bf16_f32 v{y}, v{x}, v{y}")
        a(f"v_lshlrev_b32 v{x}, 16, v{y}"); a(f"v_and_b32 v{y}, s38, v{y}")
        a(f"v_sub_f32 v{x}, v{x}, v9"); a(f"v_sub_f32 v{y}, v{y}, v9")
        a(f"v_cvt_pk_bf16_f32 v{y}, v{x}, v{y}")
        a(f"v_lshlrev_b32 v{x}, 16, v{y}"); a(f"v_and_b32 v{y}, s38, v{y}")
        a(f"v_mul_f32 v{x}, v{x}, v8"); a(f"v_mul_f32 v{y}, v{y}, v8")
        a(f"v_cvt_pk_bf16_f32 v{24+jp}, v{x}, v{y}")
    a("s_add_u32 s63, s63, 4")
    a("s_cmp_lg_u32 s63, 144")
    a(f"v_mfma_f32_32x32x16_bf16 v[{ACA}:{ACA+15}], v[28:31], v[24:27], v[{ACA}:{ACA+15}]")
    a("s_cbranch_scc1 L_s2")
    a("s_nop 7"); a("s_nop 7")
    for r in range(16):
        a(f"v_cvt_pk_bf16_f32 v{ACA+r}, v{ACA+r}, v{ACA+r}")
        a(f"s_add_u32 s61, s42, {(8*(r>>2)+(r&3))*OROW}")
        a(f"buffer_store_short v{ACA+r}, v7, s[24:27], s61 offen")
    a("s_add_u32 s62, s62, 1")
    a("s_cmp_lg_u32 s62, 9")
    a("s_cbranch_scc1 L_s1")
    a("s_branch L_fin")
    a.label("L_done")
    if o.abl:
        out=[]; inl=False
        for ln in a.l:
            if ln.startswith("L_cloop") or ln.startswith("L_ploop"): inl=True
            if ln.startswith("L_ctail") or ln.startswith("L_pdone"): inl=False
            t=ln.strip()
            if "bar" in o.abl and t=="s_barrier": continue
            if inl:
                if "rd" in o.abl and t.startswith("ds_read_b128") and " v14 " in t: continue
                if "mfma" in o.abl and t.startswith("v_mfma"): continue
                if "valu" in o.abl and (t.startswith("v_or3") or t.startswith("v_fma_mix") or (t.startswith("v_cvt_pk") and int(t.split()[1][1:-1])<64)): continue
                if "ld" in o.abl and t.startswith("buffer_load"): continue
                if "st" in o.abl and t.startswith("buffer_store"): continue
                if "wr" in o.abl and t.startswith("ds_write"): continue
                if "epi" in o.abl and (t.startswith("v_permlane") or (t.startswith("v_cvt_pk") and int(t.split()[1][1:-1])>=64)): continue
            out.append(ln)
        a.l=out
    body=a.text()
    return f"""; W4A16 GEMM (dequant fused). Generated by gen3.py
; @launch grid=(256,1,1) block=(512,1,1) lds={LDS_TOTAL}
.amdgcn_target "amdgcn-amd-amdhsa--gfx950"
.text
.globl {KN}
.p2align 8
.type {KN},@function
{KN}:
{body}    s_endpgm
.section .rodata,"a"
.p2align 6
.amdhsa_kernel {KN}
  .amdhsa_next_free_vgpr 256
  .amdhsa_next_free_sgpr 102
  .amdhsa_accum_offset 256
  .amdhsa_group_segment_fixed_size 0
  .amdhsa_kernarg_size 56
  .amdhsa_user_sgpr_count 2
  .amdhsa_user_sgpr_kernarg_segment_ptr 1
  .amdhsa_system_sgpr_workgroup_id_x 1
.end_amdhsa_kernel
""", LDS_TOTAL
if __name__=="__main__":
    ap=argparse.ArgumentParser()
    ap.add_argument("out"); ap.add_argument("--xmap",default="B"); ap.add_argument("--stmod",default="sc1")
    ap.add_argument("--pa",type=int,default=2); ap.add_argument("--stamps",action="store_true"); ap.add_argument("--trace",action="store_true")
    ap.add_argument("--prio_c",type=int,default=0); ap.add_argument("--prio_p",type=int,default=0)
    ap.add_argument("--depth",type=int,default=4); ap.add_argument("--align",type=int,default=6)
    ap.add_argument("--rot",default="p"); ap.add_argument("--abl",default=""); ap.add_argument("--tr",type=int,default=0)
    ap.add_argument("--nf",type=int,default=2); ap.add_argument("--bpos",type=int,default=0)
    x=ap.parse_args(); x.abl=[t for t in x.abl.split(",") if t]
    t,l=gen(x)
    open(x.out,"w").write(t); print("lds",l)
```

```python
import sys, argparse
KN="standalone__w4a16_gemm_dequant__prompt_kernel"
XROW=1152; QROW=18432; OROW=9216

class Asm:
    def __init__(s): s.l=[]
    def __call__(s, t): s.l.append("    "+t)
    def label(s,t): s.l.append(t+":")
    def text(s): return "\n".join(s.l)+"\n"

def gen(o):
    a=Asm()
    PA=o.pa; stmod=o.stmod if o.stmod!="none" else ""
    D=o.depth; NR=6; TR=o.tr
    PB=36864; LDS_T=0; LDS_F=2304; LDS_B=2560; LDS_A=LDS_B+PB; AW=7*4096; LDS_TOTAL=LDS_A+4*AW
    def tstamp(v):
        if not o.trace: return
        a("s_memtime s[98:99]"); a("s_mov_b32 m0, s97"); a("s_waitcnt lgkmcnt(0)"); a(f"v_writelane_b32 v{v}, s98, m0"); a("s_add_u32 s97, s97, 1")
    def tdump(v):
        if not o.trace: return
        a("s_load_dwordx2 s[92:93], s[0:1], 48"); a("s_mov_b32 s94, 0x1000000"); a("s_mov_b32 s95, 0x20000"); a("s_waitcnt lgkmcnt(0)")
        a("s_lshl_b32 s98, s2, 3"); a("s_add_u32 s98, s98, s40"); a("s_lshl_b32 s98, s98, 8"); a("s_add_u32 s98, s98, 65536")
        a("v_lshlrev_b32 v4, 2, v2")
        a(f"v_writelane_b32 v{v}, s88, 59")
        a(f"buffer_store_dword v{v}, v4, s[92:95], s98 offen")
    def align(n=6):
        if n: a.l.append(f"    .p2align {n}")
    a("s_cmp_ge_u32 s2, 256")
    a("s_cbranch_scc1 L_done")
    if o.stamps:
        a("s_memrealtime s[90:91]")
        a("s_memtime s[88:89]")
    a("s_load_dwordx2 s[16:17], s[0:1], 0")
    a("s_load_dwordx2 s[20:21], s[0:1], 8")
    a("s_load_dwordx2 s[44:45], s[0:1], 16")
    a("s_load_dwordx2 s[48:49], s[0:1], 24")
    a("s_load_dwordx2 s[24:25], s[0:1], 32")
    a("v_lshrrev_b32 v1, 6, v0")
    a("v_and_b32 v2, 63, v0")
    a("v_readfirstlane_b32 s40, v1")
    if o.trace: a("s_mov_b32 s97, 0")
    a("s_and_b32 s28, s2, 7")
    a("s_lshr_b32 s29, s2, 3")
    if o.xmap=="A":
        a("s_and_b32 s31, s29, 1"); a("s_lshl_b32 s28, s28, 1"); a("s_add_u32 s31, s31, s28"); a("s_lshr_b32 s30, s29, 1")
        a("s_mul_i32 s32, s30, 9"); a("s_lshr_b32 s32, s32, 4")
    elif o.xmap=="B":
        a("s_and_b32 s32, s29, 7"); a("s_and_b32 s33, s28, 1"); a("s_lshl_b32 s33, s33, 3"); a("s_add_u32 s30, s32, s33")
        a("s_lshr_b32 s31, s29, 3"); a("s_lshr_b32 s33, s28, 1"); a("s_lshl_b32 s33, s33, 2"); a("s_add_u32 s31, s31, s33")
    elif o.xmap=="C":
        a("s_and_b32 s32, s29, 3"); a("s_and_b32 s33, s28, 3"); a("s_lshl_b32 s33, s33, 2"); a("s_add_u32 s30, s32, s33")
        a("s_lshr_b32 s31, s29, 2"); a("s_lshr_b32 s33, s28, 2"); a("s_lshl_b32 s33, s33, 3"); a("s_add_u32 s31, s31, s33")
        a("s_lshl_b32 s32, s32, 1")
    if o.rot=="p": a("s_mov_b32 s33, 0")
    elif o.rot=="k": a("s_mov_b32 s33, s32"); a("s_mov_b32 s32, 0")
    elif o.rot=="n": a("s_mov_b32 s33, 0"); a("s_mov_b32 s32, 0")
    elif o.rot=="pk": a("s_mov_b32 s33, s32")
    a("s_mul_i32 s34, s31, 288")
    for (d,sz) in ((16,2359296),(20,10616832),(24,0),(44,9216),(48,9216)):
        a(f"s_mov_b32 s{d+2}, {sz}"); a(f"s_mov_b32 s{d+3}, 0x20000")
    a("s_cmp_ge_u32 s40, 4")
    a("s_cbranch_scc1 L_prod")

    RING=16; ACA=40; ACB=56; E=72; AREG=88
    if o.prio_c: a(f"s_setprio {o.prio_c}")
    a("v_min_u32 v3, 17, v2")
    a("v_mad_u32_u24 v12, v1, 18, v3")
    a("v_lshlrev_b32 v13, 3, v12")
    a("s_lshl_b32 s43, s34, 1")
    a("v_lshrrev_b32 v3, 3, v2")
    a("v_and_b32 v4, 7, v2")
    a("v_lshrrev_b32 v5, 1, v3")
    a("v_xor_b32 v6, v4, v5")
    a("v_xor_b32 v7, 4, v6")
    a("v_lshl_add_u32 v8, v1, 5, v3")
    a(f"v_mul_u32_u24 v8, {XROW}, v8")
    a("v_lshl_add_u32 v6, v6, 4, v8")
    a("v_lshl_add_u32 v7, v7, 4, v8")
    a(f"v_add_u32 v7, {8*XROW-1024}, v7")
    a(f"v_add_u32 v8, {16*XROW-2048}, v6")
    a(f"v_add_u32 v9, {16*XROW-2048}, v7")
    a(f"s_mul_i32 s41, s40, {AW}")
    a(f"s_add_u32 s41, s41, {LDS_A}")
    a(f"s_mul_i32 s35, s30, {128*XROW}")
    a("s_lshl_b32 s42, s33, 7")
    a("s_add_u32 s42, s42, s35")
    a("s_add_u32 s36, s35, 1152")
    a("s_mov_b32 m0, s41")
    a("s_waitcnt lgkmcnt(0)")
    a("buffer_load_dwordx2 v[16:17], v13, s[44:47], s43 offen")
    a("buffer_load_dwordx2 v[18:19], v13, s[48:51], s43 offen")
    a("s_mov_b32 s43, 7")
    def advA():
        a("s_add_u32 s42, s42, 128"); a("s_cmp_eq_u32 s42, s36"); a("s_cselect_b32 s42, s35, s42")
    a.label("L_adma")
    for i in range(4):
        a(f"buffer_load_dwordx4 v{6+i}, s[16:19], s42 offen offset:{i*1024} {o.nta} lds")
    a("s_add_u32 m0, m0, 4096")
    advA()
    a("s_sub_u32 s43, s43, 1")
    a("s_cmp_lg_u32 s43, 0")
    a("s_cbranch_scc1 L_adma")
    a("v_lshlrev_b32 v12, 5, v12")
    a("s_mov_b32 s37, 0x4b800000")
    a("s_mov_b32 s38, 0xffff0000")
    a("s_waitcnt vmcnt(28)")
    S=20; Z=24; T=28
    for e in range(4):
        sr=16+(e>>1); zr=18+(e>>1)
        if e&1:
            a(f"v_and_b32 v{S+e}, s38, v{sr}"); a(f"v_and_b32 v{Z+e}, s38, v{zr}")
        else:
            a(f"v_lshlrev_b32 v{S+e}, 16, v{sr}"); a(f"v_lshlrev_b32 v{Z+e}, 16, v{zr}")
        a(f"v_mul_f32 v{T+4+e}, -v{Z+e}, v{S+e}")
        a(f"v_mul_f32 v{T+e}, s37, v{S+e}")
    a(f"ds_write_b128 v12, v[{T}:{T+3}] offset:{LDS_T}")
    a(f"ds_write_b128 v12, v[{T+4}:{T+7}] offset:{LDS_T+16}")
    a("s_waitcnt lgkmcnt(0)")
    a("s_barrier ;keep")
    tstamp(3)
    a("s_mov_b64 s[56:57], 0")
    a("s_mov_b32 s52, 0x41000000")
    a("s_mov_b32 s53, 0x41800000")
    a("s_mov_b32 s54, 0x0dffffff")
    a("s_mov_b32 s55, 0x7fffffff")
    a("s_mov_b32 s58, 0x71800000")
    for i in range(4):
        a(f"v_mul_f32 v10, s52, v{Z+i}")
        a("v_rndne_f32 v11, v10")
        a("v_cmp_neq_f32 vcc, v10, v11")
        a("s_or_b64 s[56:57], s[56:57], vcc")
        a(f"v_cmp_nle_f32 vcc, |v{Z+i}|, s53")
        a("s_or_b64 s[56:57], s[56:57], vcc")
        a(f"v_and_b32 v10, s55, v{Z+i}")
        a("v_add_u32 v10, -1, v10")
        a("v_cmp_gt_u32 vcc, s54, v10")
        a("s_or_b64 s[56:57], s[56:57], vcc")
        a(f"v_and_b32 v10, s55, v{S+i}")
        a("v_cmp_le_u32 vcc, s58, v10")
        a("s_or_b64 s[56:57], s[56:57], vcc")
        a("v_add_u32 v10, -1, v10")
        a("v_cmp_gt_u32 vcc, s54, v10")
        a("s_or_b64 s[56:57], s[56:57], vcc")
    a("s_cmp_lg_u64 s[56:57], 0")
    a("s_cselect_b32 s43, 1, 0")
    a("v_lshlrev_b32 v11, 2, v1"); a("v_mov_b32 v10, s43")
    a(f"ds_write_b32 v11, v10 offset:{LDS_F}")
    a("v_and_b32 v16, 31, v2")
    a("v_lshrrev_b32 v4, 5, v2")
    a("v_bfe_u32 v5, v16, 1, 3")
    a("v_lshlrev_b32 v14, 7, v16")
    a("v_add_u32 v14, s41, v14")
    for q in range(4):
        a(f"v_add_u32 v15, {2*q}, v4")
        a("v_xor_b32 v15, v15, v5")
        a(f"v_lshl_add_u32 v{10+q}, v15, 4, v14")
    a(f"s_mul_i32 s43, s30, {128*OROW}")
    a("s_lshl_b32 s61, s34, 1")
    a("s_add_u32 s43, s43, s61")
    if TR:
        a("v_and_b32 v5, 1, v2")
        a("v_mul_u32_u24 v14, 17, v5")
        a("v_bfe_u32 v15, v2, 3, 1")
        a("v_xor_b32 v14, v14, v15")
        a("v_bfe_u32 v15, v2, 1, 1")
        a("v_lshl_add_u32 v14, v15, 3, v14")
        a("v_bfe_u32 v15, v2, 2, 1")
        a("v_lshl_add_u32 v14, v15, 1, v14")
        a("v_bfe_u32 v15, v2, 4, 1")
        a("v_lshl_add_u32 v14, v15, 2, v14")
        a("v_lshl_add_u32 v14, v4, 5, v14")
        a("v_lshlrev_b32 v14, 4, v14")
        a("v_lshl_add_u32 v5, v1, 5, v16")
        a(f"v_mul_u32_u24 v5, {OROW}, v5")
        a("v_add_u32 v5, s43, v5")
        a("v_lshl_add_u32 v15, v4, 4, v5")
    else:
        a("v_lshlrev_b32 v14, 4, v2")
        a("v_lshlrev_b32 v5, 5, v1")
        a("v_lshl_add_u32 v5, v4, 2, v5")
        a("v_bfe_u32 v15, v2, 4, 1")
        a("v_add_u32 v5, v5, v15")
        a(f"v_mul_u32_u24 v5, {OROW}, v5")
        a("v_add_u32 v5, s43, v5")
        a("v_and_b32 v15, 7, v2")
        a("v_lshl_add_u32 v5, v15, 3, v5")
        a("v_bfe_u32 v15, v2, 3, 1")
        a("v_lshl_add_u32 v15, v15, 2, v5")
        for r in range(8):
            rr=2*r
            a(f"s_mov_b32 s{52+r}, {(8*(rr>>2)+(rr&3))*OROW}")
    a(f"s_mov_b32 s60, {PB}")
    a("s_lshl_b32 s61, s32, 6")
    a("s_sub_u32 s61, s61, 64")
    a("s_mov_b32 s62, 9")
    issued=28
    for c in range(9):
        a(f"s_waitcnt vmcnt({issued-4*(c+1)})")
        slot=c if c<7 else c-7
        for q in range(4):
            r=AREG+4*(4*c+q)
            a(f"ds_read_b128 v[{r}:{r+3}], v{10+q} offset:{slot*4096}")
        if c<2:
            a(f"s_add_u32 m0, s41, {c*4096}")
            a("s_waitcnt lgkmcnt(0)")
            for i in range(4):
                a(f"buffer_load_dwordx4 v{6+i}, s[16:19], s42 offen offset:{i*1024} {o.nta} lds")
            if c==0: advA()
            issued+=4
    a("s_waitcnt lgkmcnt(0)")
    tstamp(3)
    a("s_barrier")
    def rd(j):
        j%=36
        r=RING+4*(j%NR)
        a(f"ds_read_b128 v[{r}:{r+3}], v14 offset:{LDS_B+j*1024}")
    for j in range(D): rd(j)
    def epi_list():
        L=[]
        if TR:
            for g in range(2):
                for i in range(4):
                    L.append(f"v_cvt_pk_bf16_f32 v{E+4*g+i}, v{ACB+8*g+2*i}, v{ACB+8*g+2*i+1}")
                L.append(f"buffer_store_dwordx4 v[{E+4*g}:{E+4*g+3}], v5, s[24:27], 0 offen offset:{32*g} {stmod}")
        else:
            for r in range(0,16,2): L.append(f"v_permlane16_swap_b32 v{ACB+r}, v{ACB+r+1}")
            L.append("s_nop 0")
            for r in range(0,16,2):
                L.append(f"v_cvt_pk_bf16_f32 v{E+r//2}, v{ACB+r}, v{ACB+r+1}")
                L.append(f"buffer_store_dword v{E+r//2}, v5, s[24:27], s{52+r//2} offen {stmod}")
        return L
    align(o.align)
    a.label("L_cloop")
    pend=["v_add_u32 v5, s61, v15","s_add_u32 s61, s61, 64","s_cmp_eq_u32 s61, 576","s_cselect_b32 s61, 0, s61"]
    for j in range(36):
        if j+D==16:
            tstamp(3); a("s_barrier"); tstamp(3)
        if j+D==36:
            a("v_add_u32 v14, s60, v14"); a("s_sub_u32 s60, 0, s60")
            tstamp(3); a("s_barrier"); tstamp(3)
        rd(j+D)
        a(f"s_waitcnt lgkmcnt({D})")
        r=RING+4*(j%NR); A=AREG+4*j; C=ACA if j<18 else ACB
        src="0" if j==0 else f"v[{ACA}:{ACA+15}]" if j<=18 else f"v[{ACB}:{ACB+15}]"
        if TR: a(f"v_mfma_f32_32x32x16_bf16 v[{C}:{C+15}], v[{r}:{r+3}], v[{A}:{A+3}], {src}")
        else:  a(f"v_mfma_f32_32x32x16_bf16 v[{C}:{C+15}], v[{A}:{A+3}], v[{r}:{r+3}], {src}")
        if j==3: pend+=epi_list()+["s_mov_b32 s26, 18874368","s_sub_u32 s62, s62, 1"]
        for _ in range(o.nf):
            if pend: a(pend.pop(0))
        if j==17: assert not pend
    assert not pend
    a("s_cmp_lg_u32 s62, 0")
    a("s_cbranch_scc1 L_cloop")
    a.label("L_ctail")
    a("v_add_u32 v5, s61, v15")
    a("v_mov_b32 v4, 0")
    a(f"ds_read_b128 v[8:11], v4 offset:{LDS_F}")
    a(f"ds_read_b128 v[16:19], v4 offset:{LDS_F+16}")
    a("s_nop 7")
    for t in epi_list(): a(t)
    tstamp(3); tdump(3)
    a("s_waitcnt lgkmcnt(0)")
    a("v_or3_b32 v8, v8, v9, v10")
    a("v_or3_b32 v8, v8, v11, v16")
    a("v_or3_b32 v8, v8, v17, v18")
    a("v_or_b32 v8, v8, v19")
    a("s_nop 0")
    a("v_readfirstlane_b32 s43, v8")
    a("s_cmp_lg_u32 s43, 0")
    if not o.abl: a("s_cbranch_scc1 L_slow")
    a.label("L_fin")
    if o.stamps:
        a("s_cmp_lg_u32 s40, 0"); a("s_cbranch_scc1 L_done")
        a("s_load_dwordx2 s[92:93], s[0:1], 48")
        a("s_waitcnt vmcnt(0)")
        a("s_memrealtime s[96:97]")
        a("s_memtime s[86:87]")
        a("s_mov_b32 s94, 65536"); a("s_mov_b32 s95, 0x20000")
        a("s_waitcnt lgkmcnt(0)")
        a("v_mov_b32 v10, s90"); a("v_mov_b32 v11, s91"); a("v_mov_b32 v12, s96"); a("v_mov_b32 v13, s97")
        a("s_lshl_b32 s98, s2, 5"); a("v_mov_b32 v14, 0")
        a("buffer_store_dwordx4 v[10:13], v14, s[92:95], s98 offen")
        a("s_sub_u32 s86, s86, s88"); a("s_subb_u32 s87, s87, s89")
        a("v_mov_b32 v10, s86"); a("v_mov_b32 v11, s87")
        a("buffer_store_dwordx2 v[10:11], v14, s[92:95], s98 offen offset:16")
    a("s_endpgm")

    a.label("L_prod")
    if o.prio_p: a(f"s_setprio {o.prio_p}")
    VOFF=8; VOFS=16; WAD=18; WS=20; TAD=22; TA2=23; ORA=24; CST=28; OUT=44; OUTS=60; RAW=64
    a("s_sub_u32 s41, s40, 4")
    a("v_and_b32 v5, 7, v2")
    a("v_lshrrev_b32 v6, 3, v2")
    a(f"v_mul_u32_u24 v7, {8*QROW}, v6")
    a(f"v_lshl_add_u32 v{VOFF}, v5, 4, v7")
    for j in range(1,8):
        a(f"v_add_u32 v{VOFF+j}, {j*QROW}, v{VOFF}")
    a("s_lshl_b32 s42, s41, 4")
    a("v_lshl_add_u32 v7, v6, 1, s42")
    a(f"v_mul_u32_u24 v7, {QROW}, v7")
    a(f"v_lshl_add_u32 v{VOFS}, v5, 4, v7")
    a(f"v_add_u32 v{VOFS+1}, {QROW}, v{VOFS}")
    for i,base in enumerate(("s41",4,8)):
        if i==0: a("s_add_u32 s52, s41, s33")
        elif i==1: a("s_add_u32 s53, s52, 4")
        else: a("s_add_u32 s54, s33, 8")
    for i in range(3):
        a(f"s_sub_u32 s42, s{52+i}, 9"); a(f"s_cmp_ge_u32 s{52+i}, 9"); a(f"s_cselect_b32 s{52+i}, s42, s{52+i}")
        a(f"s_mul_i32 s{52+i}, s{52+i}, {64*QROW}")
    a("s_lshl_b32 s39, s34, 2")
    for i in range(3): a(f"s_add_u32 s{52+i}, s{52+i}, s39")
    a("s_lshl_b32 s63, s32, 7")
    a("s_waitcnt lgkmcnt(0)")
    def adv():
        a("s_add_u32 s63, s63, 128"); a("s_cmp_eq_u32 s63, 1152"); a("s_cselect_b32 s63, 0, s63")
    def ld(ps,t,j,so,pro=-1):
        r=RAW+72*ps+32*t+4*j
        vo=VOFF+j if t<2 else VOFS+j
        a(f"buffer_load_dwordx4 v[{r}:{r+3}], v{vo}, s[20:23], {so} offen {o.ntb if pro<0 else ('nt' if pro<o.ntp else '')}")
    for ps in range(PA):
        for t in range(3):
            a(f"s_add_u32 s42, s{52+t}, s63")
            for j in range(8 if t<2 else 2): ld(ps,t,j,"s42",ps)
        adv()
    a("s_lshl_b32 s42, s41, 12")
    a(f"s_add_u32 s42, s42, {LDS_B}")
    a("v_lshrrev_b32 v7, 1, v6")
    a(f"v_lshlrev_b32 v{WAD}, 10, v7")
    a("v_and_b32 v7, 1, v6")
    a(f"v_lshl_add_u32 v{WAD}, v7, 9, v{WAD}")
    a(f"v_lshl_add_u32 v{WAD}, v5, 4, v{WAD}")
    a(f"v_add_u32 v{WAD}, s42, v{WAD}")
    a("s_lshl_b32 s42, s41, 10")
    a(f"s_add_u32 s42, s42, {LDS_B+32768}")
    a("v_lshrrev_b32 v7, 2, v6")
    a(f"v_lshlrev_b32 v{WS}, 9, v7")
    a("v_and_b32 v7, 3, v6")
    a(f"v_lshl_add_u32 v{WS}, v7, 2, v{WS}")
    a(f"v_lshl_add_u32 v{WS}, v5, 4, v{WS}")
    a(f"v_add_u32 v{WS}, s42, v{WS}")
    if TR:
        a(f"v_xor_b32 v{WAD+1}, 16, v{WAD}")
        a(f"v_xor_b32 v{WS+1}, 16, v{WS}")
    a(f"v_lshlrev_b32 v{TAD}, 5, v5")
    a(f"v_mov_b32 v{ORA}, 0"); a(f"v_mov_b32 v{ORA+1}, 0")
    a("s_lshl_b32 s61, s32, 8")
    a(f"v_add_u32 v{TA2}, s61, v{TAD}")
    a("s_mov_b32 s62, 9")
    a(f"s_mov_b32 s60, {PB}")
    a("s_barrier ;keep")
    a(f"ds_read_b128 v[{CST}:{CST+3}], v{TA2} offset:{LDS_T}")
    a(f"ds_read_b128 v[{CST+4}:{CST+7}], v{TA2} offset:{LDS_T+16}")
    a("s_waitcnt lgkmcnt(0)")
    tstamp(3)
    align(o.align)
    a.label("L_ploop")
    NL=18*PA
    for ps in range(2):
        rs=ps%PA
        CS=CST+8*ps; CC=CS+4; CN=CST+8*(1-ps)
        a(f"s_cmp_le_u32 s62, {PA}")
        a("s_cselect_b32 s22, 0, s22")
        a("s_add_u32 s61, s61, 256"); a("s_cmp_eq_u32 s61, 2304"); a("s_cselect_b32 s61, 0, s61")
        a(f"v_add_u32 v{TA2}, s61, v{TAD}")
        def grp(r0,r1,o_):
            for e in range(4):
                a(f"v_or3_b32 v{ORA+(e&1)}, v{ORA+(e&1)}, v{r0+e}, v{r1+e}")
                a(f"v_fma_mix_f32 v{r0+e}, v{r0+e}, v{CS+e}, v{CC+e} op_sel_hi:[1,0,0]")
                a(f"v_fma_mix_f32 v{r1+e}, v{r1+e}, v{CS+e}, v{CC+e} op_sel_hi:[1,0,0]")
                if e: a(f"v_cvt_pk_bf16_f32 v{o_(e-1)}, v{r0+e-1}, v{r1+e-1}")
            a(f"v_cvt_pk_bf16_f32 v{o_(3)}, v{r0+3}, v{r1+3}")
        for t in range(2):
            base=RAW+72*rs+32*t
            a(f"s_add_u32 s42, s{52+t}, s63")
            for jp in range(4):
                a(f"s_waitcnt vmcnt({NL-2})")
                if jp==0: tstamp(3)
                grp(base+8*jp,base+8*jp+4,lambda e:OUT+4*e+jp)
                if jp<3: ld(rs,t,2*jp,"s42"); ld(rs,t,2*jp+1,"s42")
                if jp==o.bpos:
                    if t==0:
                        a("s_cmp_eq_u32 s62, 9")
                        a(f"s_cbranch_scc1 L_skip{ps}")
                    a("s_waitcnt lgkmcnt(0)")
                    tstamp(3)
                    a("s_barrier")
                    if t==0:
                        a.label(f"L_skip{ps}")
                        a(f"ds_read_b128 v[{CN}:{CN+3}], v{TA2} offset:{LDS_T}")
                        a(f"ds_read_b128 v[{CN+4}:{CN+7}], v{TA2} offset:{LDS_T+16}")
            for e in range(4):
                wa=WAD+(e&1) if TR else WAD
                a(f"ds_write_b128 v{wa}, v[{OUT+4*e}:{OUT+4*e+3}] offset:{t*16384+(e>>1)*128+(e&1)*256}")
            ld(rs,t,6,"s42"); ld(rs,t,7,"s42")
        base=RAW+72*rs+64
        a("s_add_u32 s42, s54, s63")
        a(f"s_waitcnt vmcnt({NL-2})")
        grp(base,base+4,lambda e:OUTS+e)
        for e in range(4):
            wa=WS+(e&1) if TR else WS
            a(f"ds_write_b32 v{wa}, v{OUTS+e} offset:{(e>>1)*128+(e&1)*256}")
        ld(rs,2,0,"s42"); ld(rs,2,1,"s42")
        for w in ([WAD,WAD+1,WS,WS+1] if TR else [WAD,WS]):
            a(f"v_add_u32 v{w}, s60, v{w}")
        a("s_sub_u32 s60, 0, s60")
        adv()
        a("s_sub_u32 s62, s62, 1")
        a("s_cmp_lg_u32 s62, 0")
        if ps==0: a("s_cbranch_scc0 L_pdone")
        else: a("s_cbranch_scc1 L_ploop")
    a.label("L_pdone")
    a("s_waitcnt lgkmcnt(0)")
    a("s_barrier")
    a(f"v_or_b32 v{ORA}, v{ORA}, v{ORA+1}")
    a(f"v_cmp_lt_u32 vcc, 15, v{ORA}")
    a("s_lshl_b32 s42, s40, 2")
    a("s_cmp_lg_u64 vcc, 0")
    a("s_cselect_b32 s43, 1, 0")
    a("v_mov_b32 v7, s42"); a("v_mov_b32 v6, s43")
    a(f"ds_write_b32 v7, v6 offset:{LDS_F}")
    a("s_waitcnt lgkmcnt(0)")
    a("s_barrier")
    tdump(3)
    a("s_endpgm")

    a.label("L_slow")
    a("s_waitcnt vmcnt(0)")
    a("s_setreg_imm32_b32 hwreg(HW_REG_MODE, 4, 2), 3")
    a("v_and_b32 v3, 31, v2")
    a("v_lshrrev_b32 v4, 5, v2")
    a(f"v_mul_u32_u24 v5, {8*QROW}, v4")
    a("v_lshl_add_u32 v5, v3, 2, v5")
    a("v_lshlrev_b32 v6, 1, v3")
    a("v_lshlrev_b32 v7, 5, v1")
    a("v_lshl_add_u32 v7, v4, 2, v7")
    a(f"v_mul_u32_u24 v7, {OROW}, v7")
    a("v_add_u32 v7, v7, v6")
    a(f"s_mul_i32 s41, s30, {128*OROW}")
    a("v_add_u32 v7, s41, v7")
    a("s_mov_b32 s38, 0xffff0000")
    a("s_mov_b32 s62, 0")
    a.label("L_s1")
    a("s_lshl_b32 s41, s62, 5")
    a("s_add_u32 s41, s41, s34")
    a("s_lshl_b32 s42, s41, 1")
    a("buffer_load_ushort v8, v6, s[44:47], s42 offen")
    a("buffer_load_ushort v9, v6, s[48:51], s42 offen")
    a("s_lshl_b32 s35, s41, 2")
    a(f"s_add_u32 s36, s35, {576*QROW}")
    a(f"s_mul_i32 s43, s33, {64*QROW}")
    a("s_add_u32 s43, s43, s35")
    for r in range(16): a(f"v_mov_b32 v{ACA+r}, 0")
    a("s_waitcnt vmcnt(0)")
    a("v_lshlrev_b32 v8, 16, v8")
    a("v_lshlrev_b32 v9, 16, v9")
    a("s_mov_b32 s63, 0")
    a.label("L_s2")
    for j in range(8):
        a(f"s_add_u32 s61, s43, {j*QROW}")
        a(f"buffer_load_dword v{16+j}, v5, s[20:23], s61 offen")
    a(f"s_add_u32 s43, s43, {16*QROW}")
    a("s_cmp_eq_u32 s43, s36")
    a("s_cselect_b32 s43, s35, s43")
    a("s_set_gpr_idx_on s63, gpr_idx(SRC0)")
    for i in range(4): a(f"v_mov_b32 v{28+i}, v{AREG+i}")
    a("s_set_gpr_idx_off")
    a("s_waitcnt vmcnt(0)")
    for jp in range(4):
        x=16+2*jp; y=x+1
        a(f"v_cvt_f32_i32 v{x}, v{x}"); a(f"v_cvt_f32_i32 v{y}, v{y}")
        a(f"v_cvt_pk_bf16_f32 v{y}, v{x}, v{y}")
        a(f"v_lshlrev_b32 v{x}, 16, v{y}"); a(f"v_and_b32 v{y}, s38, v{y}")
        a(f"v_sub_f32 v{x}, v{x}, v9"); a(f"v_sub_f32 v{y}, v{y}, v9")
        a(f"v_cvt_pk_bf16_f32 v{y}, v{x}, v{y}")
        a(f"v_lshlrev_b32 v{x}, 16, v{y}"); a(f"v_and_b32 v{y}, s38, v{y}")
        a(f"v_mul_f32 v{x}, v{x}, v8"); a(f"v_mul_f32 v{y}, v{y}, v8")
        a(f"v_cvt_pk_bf16_f32 v{24+jp}, v{x}, v{y}")
    a("s_add_u32 s63, s63, 4")
    a("s_cmp_lg_u32 s63, 144")
    a(f"v_mfma_f32_32x32x16_bf16 v[{ACA}:{ACA+15}], v[28:31], v[24:27], v[{ACA}:{ACA+15}]")
    a("s_cbranch_scc1 L_s2")
    a("s_nop 7"); a("s_nop 7")
    for r in range(16):
        a(f"v_cvt_pk_bf16_f32 v{ACA+r}, v{ACA+r}, v{ACA+r}")
        a(f"s_add_u32 s61, s42, {(8*(r>>2)+(r&3))*OROW}")
        a(f"buffer_store_short v{ACA+r}, v7, s[24:27], s61 offen")
    a("s_add_u32 s62, s62, 1")
    a("s_cmp_lg_u32 s62, 9")
    a("s_cbranch_scc1 L_s1")
    a("s_branch L_fin")
    a.label("L_done")
    if o.abl:
        out=[]; inl=False
        for ln in a.l:
            if ln.startswith("L_cloop") or ln.startswith("L_ploop"): inl=True
            if ln.startswith("L_ctail") or ln.startswith("L_pdone"): inl=False
            t=ln.strip()
            if "bar" in o.abl and t=="s_barrier": continue
            if inl:
                if "rd" in o.abl and t.startswith("ds_read_b128") and " v14 " in t: continue
                if "mfma" in o.abl and t.startswith("v_mfma"): continue
                if "valu" in o.abl and (t.startswith("v_or3") or t.startswith("v_fma_mix") or (t.startswith("v_cvt_pk") and int(t.split()[1][1:-1])<64)): continue
                if "ld" in o.abl and t.startswith("buffer_load"): continue
                if "st" in o.abl and t.startswith("buffer_store"): continue
                if "wr" in o.abl and t.startswith("ds_write"): continue
                if "epi" in o.abl and (t.startswith("v_permlane") or (t.startswith("v_cvt_pk") and int(t.split()[1][1:-1])>=64)): continue
            out.append(ln)
        a.l=out
    body=a.text()
    return f"""; W4A16 GEMM (dequant fused). Generated by gen3.py
; @launch grid=(256,1,1) block=(512,1,1) lds={LDS_TOTAL}
.amdgcn_target "amdgcn-amd-amdhsa--gfx950"
.text
.globl {KN}
.p2align 8
.type {KN},@function
{KN}:
{body}    s_endpgm
.section .rodata,"a"
.p2align 6
.amdhsa_kernel {KN}
  .amdhsa_next_free_vgpr 256
  .amdhsa_next_free_sgpr 102
  .amdhsa_accum_offset 256
  .amdhsa_group_segment_fixed_size 0
  .amdhsa_kernarg_size 56
  .amdhsa_user_sgpr_count 2
  .amdhsa_user_sgpr_kernarg_segment_ptr 1
  .amdhsa_system_sgpr_workgroup_id_x 1
.end_amdhsa_kernel
""", LDS_TOTAL
if __name__=="__main__":
    ap=argparse.ArgumentParser()
    ap.add_argument("out"); ap.add_argument("--xmap",default="B"); ap.add_argument("--stmod",default="sc1")
    ap.add_argument("--pa",type=int,default=2); ap.add_argument("--stamps",action="store_true"); ap.add_argument("--trace",action="store_true")
    ap.add_argument("--prio_c",type=int,default=0); ap.add_argument("--prio_p",type=int,default=0)
    ap.add_argument("--depth",type=int,default=4); ap.add_argument("--align",type=int,default=6)
    ap.add_argument("--rot",default="p"); ap.add_argument("--abl",default=""); ap.add_argument("--tr",type=int,default=0)
    ap.add_argument("--nta",default=""); ap.add_argument("--ntb",default=""); ap.add_argument("--ntp",type=int,default=0); ap.add_argument("--nf",type=int,default=2); ap.add_argument("--bpos",type=int,default=0)
    x=ap.parse_args(); x.abl=[t for t in x.abl.split(",") if t]
    t,l=gen(x)
    open(x.out,"w").write(t); print("lds",l)
```

```python
import sys, argparse
KN="standalone__w4a16_gemm_dequant__prompt_kernel"
XROW=1152; QROW=18432; OROW=9216

class Asm:
    def __init__(s): s.l=[]
    def __call__(s, t): s.l.append("    "+t)
    def label(s,t): s.l.append(t+":")
    def text(s): return "\n".join(s.l)+"\n"

def gen(o):
    a=Asm()
    PA=o.pa; stmod=o.stmod if o.stmod!="none" else ""
    D=o.depth; NR=6; TR=o.tr
    PB=36864; LDS_T=0; LDS_F=2304; LDS_B=2560; LDS_A=LDS_B+PB; AW=7*4096; LDS_TOTAL=LDS_A+4*AW
    def tstamp(v):
        if not o.trace: return
        a("s_memtime s[98:99]"); a("s_mov_b32 m0, s97"); a("s_waitcnt lgkmcnt(0)"); a(f"v_writelane_b32 v{v}, s98, m0"); a("s_add_u32 s97, s97, 1")
    def tdump(v):
        if not o.trace: return
        a("s_load_dwordx2 s[92:93], s[0:1], 48"); a("s_mov_b32 s94, 0x1000000"); a("s_mov_b32 s95, 0x20000"); a("s_waitcnt lgkmcnt(0)")
        a("s_lshl_b32 s98, s2, 3"); a("s_add_u32 s98, s98, s40"); a("s_lshl_b32 s98, s98, 8"); a("s_add_u32 s98, s98, 65536")
        a("v_lshlrev_b32 v4, 2, v2")
        a(f"v_writelane_b32 v{v}, s88, 59")
        a(f"buffer_store_dword v{v}, v4, s[92:95], s98 offen")
    def align(n=6):
        if n: a.l.append(f"    .p2align {n}")
    a("s_cmp_ge_u32 s2, 256")
    a("s_cbranch_scc1 L_done")
    if o.fixdur: a("s_memrealtime s[84:85]")
    if o.stamps:
        a("s_memrealtime s[90:91]")
        a("s_memtime s[88:89]")
    a("s_load_dwordx2 s[16:17], s[0:1], 0")
    a("s_load_dwordx2 s[20:21], s[0:1], 8")
    a("s_load_dwordx2 s[44:45], s[0:1], 16")
    a("s_load_dwordx2 s[48:49], s[0:1], 24")
    a("s_load_dwordx2 s[24:25], s[0:1], 32")
    a("v_lshrrev_b32 v1, 6, v0")
    a("v_and_b32 v2, 63, v0")
    a("v_readfirstlane_b32 s40, v1")
    if o.trace: a("s_mov_b32 s97, 0")
    a("s_and_b32 s28, s2, 7")
    a("s_lshr_b32 s29, s2, 3")
    if o.xmap=="A":
        a("s_and_b32 s31, s29, 1"); a("s_lshl_b32 s28, s28, 1"); a("s_add_u32 s31, s31, s28"); a("s_lshr_b32 s30, s29, 1")
        a("s_mul_i32 s32, s30, 9"); a("s_lshr_b32 s32, s32, 4")
    elif o.xmap=="B":
        a("s_and_b32 s32, s29, 7"); a("s_and_b32 s33, s28, 1"); a("s_lshl_b32 s33, s33, 3"); a("s_add_u32 s30, s32, s33")
        a("s_lshr_b32 s31, s29, 3"); a("s_lshr_b32 s33, s28, 1"); a("s_lshl_b32 s33, s33, 2"); a("s_add_u32 s31, s31, s33")
    elif o.xmap=="C":
        a("s_and_b32 s32, s29, 3"); a("s_and_b32 s33, s28, 3"); a("s_lshl_b32 s33, s33, 2"); a("s_add_u32 s30, s32, s33")
        a("s_lshr_b32 s31, s29, 2"); a("s_lshr_b32 s33, s28, 2"); a("s_lshl_b32 s33, s33, 3"); a("s_add_u32 s31, s31, s33")
        a("s_lshl_b32 s32, s32, 1")
    if o.rot=="p": a("s_mov_b32 s33, 0")
    elif o.rot=="k": a("s_mov_b32 s33, s32"); a("s_mov_b32 s32, 0")
    elif o.rot=="n": a("s_mov_b32 s33, 0"); a("s_mov_b32 s32, 0")
    elif o.rot=="pk": a("s_mov_b32 s33, s32")
    a("s_mul_i32 s34, s31, 288")
    for (d,sz) in ((16,2359296),(20,10616832),(24,0),(44,9216),(48,9216)):
        a(f"s_mov_b32 s{d+2}, {sz}"); a(f"s_mov_b32 s{d+3}, 0x20000")
    a("s_cmp_ge_u32 s40, 4")
    a("s_cbranch_scc1 L_prod")

    RING=16; ACA=40; ACB=56; E=72; AREG=88
    if o.prio_c: a(f"s_setprio {o.prio_c}")
    a("v_min_u32 v3, 17, v2")
    a("v_mad_u32_u24 v12, v1, 18, v3")
    a("v_lshlrev_b32 v13, 3, v12")
    a("s_lshl_b32 s43, s34, 1")
    a("v_lshrrev_b32 v3, 3, v2")
    a("v_and_b32 v4, 7, v2")
    a("v_lshrrev_b32 v5, 1, v3")
    a("v_xor_b32 v6, v4, v5")
    a("v_xor_b32 v7, 4, v6")
    a("v_lshl_add_u32 v8, v1, 5, v3")
    a(f"v_mul_u32_u24 v8, {XROW}, v8")
    a("v_lshl_add_u32 v6, v6, 4, v8")
    a("v_lshl_add_u32 v7, v7, 4, v8")
    a(f"v_add_u32 v7, {8*XROW-1024}, v7")
    a(f"v_add_u32 v8, {16*XROW-2048}, v6")
    a(f"v_add_u32 v9, {16*XROW-2048}, v7")
    a(f"s_mul_i32 s41, s40, {AW}")
    a(f"s_add_u32 s41, s41, {LDS_A}")
    a(f"s_mul_i32 s35, s30, {128*XROW}")
    a("s_lshl_b32 s42, s33, 7")
    a("s_add_u32 s42, s42, s35")
    a("s_add_u32 s36, s35, 1152")
    a("s_mov_b32 m0, s41")
    a("s_waitcnt lgkmcnt(0)")
    a("buffer_load_dwordx2 v[16:17], v13, s[44:47], s43 offen")
    a("buffer_load_dwordx2 v[18:19], v13, s[48:51], s43 offen")
    a("s_mov_b32 s43, 7")
    def advA():
        a("s_add_u32 s42, s42, 128"); a("s_cmp_eq_u32 s42, s36"); a("s_cselect_b32 s42, s35, s42")
    a.label("L_adma")
    for i in range(4):
        a(f"buffer_load_dwordx4 v{6+i}, s[16:19], s42 offen offset:{i*1024} {o.nta} lds")
    a("s_add_u32 m0, m0, 4096")
    advA()
    a("s_sub_u32 s43, s43, 1")
    a("s_cmp_lg_u32 s43, 0")
    a("s_cbranch_scc1 L_adma")
    a("v_lshlrev_b32 v12, 5, v12")
    a("s_mov_b32 s37, 0x4b800000")
    a("s_mov_b32 s38, 0xffff0000")
    a("s_waitcnt vmcnt(28)")
    S=20; Z=24; T=28
    for e in range(4):
        sr=16+(e>>1); zr=18+(e>>1)
        if e&1:
            a(f"v_and_b32 v{S+e}, s38, v{sr}"); a(f"v_and_b32 v{Z+e}, s38, v{zr}")
        else:
            a(f"v_lshlrev_b32 v{S+e}, 16, v{sr}"); a(f"v_lshlrev_b32 v{Z+e}, 16, v{zr}")
        a(f"v_mul_f32 v{T+4+e}, -v{Z+e}, v{S+e}")
        a(f"v_mul_f32 v{T+e}, s37, v{S+e}")
    a(f"ds_write_b128 v12, v[{T}:{T+3}] offset:{LDS_T}")
    a(f"ds_write_b128 v12, v[{T+4}:{T+7}] offset:{LDS_T+16}")
    a("s_waitcnt lgkmcnt(0)")
    a("s_barrier ;keep")
    tstamp(3)
    a("s_mov_b64 s[56:57], 0")
    a("s_mov_b32 s52, 0x41000000")
    a("s_mov_b32 s53, 0x41800000")
    a("s_mov_b32 s54, 0x0dffffff")
    a("s_mov_b32 s55, 0x7fffffff")
    a("s_mov_b32 s58, 0x71800000")
    for i in range(4):
        a(f"v_mul_f32 v10, s52, v{Z+i}")
        a("v_rndne_f32 v11, v10")
        a("v_cmp_neq_f32 vcc, v10, v11")
        a("s_or_b64 s[56:57], s[56:57], vcc")
        a(f"v_cmp_nle_f32 vcc, |v{Z+i}|, s53")
        a("s_or_b64 s[56:57], s[56:57], vcc")
        a(f"v_and_b32 v10, s55, v{Z+i}")
        a("v_add_u32 v10, -1, v10")
        a("v_cmp_gt_u32 vcc, s54, v10")
        a("s_or_b64 s[56:57], s[56:57], vcc")
        a(f"v_and_b32 v10, s55, v{S+i}")
        a("v_cmp_le_u32 vcc, s58, v10")
        a("s_or_b64 s[56:57], s[56:57], vcc")
        a("v_add_u32 v10, -1, v10")
        a("v_cmp_gt_u32 vcc, s54, v10")
        a("s_or_b64 s[56:57], s[56:57], vcc")
    a("s_cmp_lg_u64 s[56:57], 0")
    a("s_cselect_b32 s43, 1, 0")
    a("v_lshlrev_b32 v11, 2, v1"); a("v_mov_b32 v10, s43")
    a(f"ds_write_b32 v11, v10 offset:{LDS_F}")
    a("v_and_b32 v16, 31, v2")
    a("v_lshrrev_b32 v4, 5, v2")
    a("v_bfe_u32 v5, v16, 1, 3")
    a("v_lshlrev_b32 v14, 7, v16")
    a("v_add_u32 v14, s41, v14")
    for q in range(4):
        a(f"v_add_u32 v15, {2*q}, v4")
        a("v_xor_b32 v15, v15, v5")
        a(f"v_lshl_add_u32 v{10+q}, v15, 4, v14")
    a(f"s_mul_i32 s43, s30, {128*OROW}")
    a("s_lshl_b32 s61, s34, 1")
    a("s_add_u32 s43, s43, s61")
    if TR:
        a("v_and_b32 v5, 1, v2")
        a("v_mul_u32_u24 v14, 17, v5")
        a("v_bfe_u32 v15, v2, 3, 1")
        a("v_xor_b32 v14, v14, v15")
        a("v_bfe_u32 v15, v2, 1, 1")
        a("v_lshl_add_u32 v14, v15, 3, v14")
        a("v_bfe_u32 v15, v2, 2, 1")
        a("v_lshl_add_u32 v14, v15, 1, v14")
        a("v_bfe_u32 v15, v2, 4, 1")
        a("v_lshl_add_u32 v14, v15, 2, v14")
        a("v_lshl_add_u32 v14, v4, 5, v14")
        a("v_lshlrev_b32 v14, 4, v14")
        a("v_lshl_add_u32 v5, v1, 5, v16")
        a(f"v_mul_u32_u24 v5, {OROW}, v5")
        a("v_add_u32 v5, s43, v5")
        a("v_lshl_add_u32 v15, v4, 4, v5")
    else:
        a("v_lshlrev_b32 v14, 4, v2")
        a("v_lshlrev_b32 v5, 5, v1")
        a("v_lshl_add_u32 v5, v4, 2, v5")
        a("v_bfe_u32 v15, v2, 4, 1")
        a("v_add_u32 v5, v5, v15")
        a(f"v_mul_u32_u24 v5, {OROW}, v5")
        a("v_add_u32 v5, s43, v5")
        a("v_and_b32 v15, 7, v2")
        a("v_lshl_add_u32 v5, v15, 3, v5")
        a("v_bfe_u32 v15, v2, 3, 1")
        a("v_lshl_add_u32 v15, v15, 2, v5")
        for r in range(8):
            rr=2*r
            a(f"s_mov_b32 s{52+r}, {(8*(rr>>2)+(rr&3))*OROW}")
    a(f"s_mov_b32 s60, {PB}")
    a("s_lshl_b32 s61, s32, 6")
    a("s_sub_u32 s61, s61, 64")
    a("s_mov_b32 s62, 9")
    issued=28
    for c in range(9):
        a(f"s_waitcnt vmcnt({issued-4*(c+1)})")
        slot=c if c<7 else c-7
        for q in range(4):
            r=AREG+4*(4*c+q)
            a(f"ds_read_b128 v[{r}:{r+3}], v{10+q} offset:{slot*4096}")
        if c<2:
            a(f"s_add_u32 m0, s41, {c*4096}")
            a("s_waitcnt lgkmcnt(0)")
            for i in range(4):
                a(f"buffer_load_dwordx4 v{6+i}, s[16:19], s42 offen offset:{i*1024} {o.nta} lds")
            if c==0: advA()
            issued+=4
    a("s_waitcnt lgkmcnt(0)")
    tstamp(3)
    a("s_barrier")
    def rd(j):
        j%=36
        r=RING+4*(j%NR)
        a(f"ds_read_b128 v[{r}:{r+3}], v14 offset:{LDS_B+j*1024}")
    for j in range(D): rd(j)
    def epi_list():
        L=[]
        if TR:
            for g in range(2):
                for i in range(4):
                    L.append(f"v_cvt_pk_bf16_f32 v{E+4*g+i}, v{ACB+8*g+2*i}, v{ACB+8*g+2*i+1}")
                L.append(f"buffer_store_dwordx4 v[{E+4*g}:{E+4*g+3}], v5, s[24:27], 0 offen offset:{32*g} {stmod}")
        else:
            for r in range(0,16,2): L.append(f"v_permlane16_swap_b32 v{ACB+r}, v{ACB+r+1}")
            L.append("s_nop 0")
            for r in range(0,16,2):
                L.append(f"v_cvt_pk_bf16_f32 v{E+r//2}, v{ACB+r}, v{ACB+r+1}")
                L.append(f"buffer_store_dword v{E+r//2}, v5, s[24:27], s{52+r//2} offen {stmod}")
        return L
    align(o.align)
    a.label("L_cloop")
    pend=["v_add_u32 v5, s61, v15","s_add_u32 s61, s61, 64","s_cmp_eq_u32 s61, 576","s_cselect_b32 s61, 0, s61"]
    for j in range(36):
        if j+D==16:
            tstamp(3); a("s_barrier"); tstamp(3)
        if j+D==36:
            a("v_add_u32 v14, s60, v14"); a("s_sub_u32 s60, 0, s60")
            tstamp(3); a("s_barrier"); tstamp(3)
        rd(j+D)
        a(f"s_waitcnt lgkmcnt({D})")
        r=RING+4*(j%NR); A=AREG+4*j; C=ACA if j<18 else ACB
        src="0" if j==0 else f"v[{ACA}:{ACA+15}]" if j<=18 else f"v[{ACB}:{ACB+15}]"
        if TR: a(f"v_mfma_f32_32x32x16_bf16 v[{C}:{C+15}], v[{r}:{r+3}], v[{A}:{A+3}], {src}")
        else:  a(f"v_mfma_f32_32x32x16_bf16 v[{C}:{C+15}], v[{A}:{A+3}], v[{r}:{r+3}], {src}")
        if j==3: pend+=epi_list()+["s_mov_b32 s26, 18874368","s_sub_u32 s62, s62, 1"]
        for _ in range(o.nf):
            if pend: a(pend.pop(0))
        if j==17: assert not pend
    assert not pend
    a("s_cmp_lg_u32 s62, 0")
    a("s_cbranch_scc1 L_cloop")
    a.label("L_ctail")
    a("v_add_u32 v5, s61, v15")
    a("v_mov_b32 v4, 0")
    a(f"ds_read_b128 v[8:11], v4 offset:{LDS_F}")
    a(f"ds_read_b128 v[16:19], v4 offset:{LDS_F+16}")
    a("s_nop 7")
    for t in epi_list(): a(t)
    tstamp(3); tdump(3)
    a("s_waitcnt lgkmcnt(0)")
    a("v_or3_b32 v8, v8, v9, v10")
    a("v_or3_b32 v8, v8, v11, v16")
    a("v_or3_b32 v8, v8, v17, v18")
    a("v_or_b32 v8, v8, v19")
    a("s_nop 0")
    a("v_readfirstlane_b32 s43, v8")
    a("s_cmp_lg_u32 s43, 0")
    if not o.abl: a("s_cbranch_scc1 L_slow")
    a.label("L_fin")
    if o.fixdur:
        a("s_waitcnt vmcnt(0)")
        a.label("L_spin")
        a("s_memrealtime s[82:83]"); a("s_waitcnt lgkmcnt(0)"); a("s_sub_u32 s82, s82, s84"); a(f"s_cmp_lt_u32 s82, {o.fixdur}"); a("s_cbranch_scc1 L_spin")
    if o.stamps:
        a("s_cmp_lg_u32 s40, 0"); a("s_cbranch_scc1 L_done")
        a("s_load_dwordx2 s[92:93], s[0:1], 48")
        a("s_waitcnt vmcnt(0)")
        a("s_memrealtime s[96:97]")
        a("s_memtime s[86:87]")
        a("s_mov_b32 s94, 65536"); a("s_mov_b32 s95, 0x20000")
        a("s_waitcnt lgkmcnt(0)")
        a("v_mov_b32 v10, s90"); a("v_mov_b32 v11, s91"); a("v_mov_b32 v12, s96"); a("v_mov_b32 v13, s97")
        a("s_lshl_b32 s98, s2, 5"); a("v_mov_b32 v14, 0")
        a("buffer_store_dwordx4 v[10:13], v14, s[92:95], s98 offen")
        a("s_sub_u32 s86, s86, s88"); a("s_subb_u32 s87, s87, s89")
        a("v_mov_b32 v10, s86"); a("v_mov_b32 v11, s87")
        a("buffer_store_dwordx2 v[10:11], v14, s[92:95], s98 offen offset:16")
    a("s_endpgm")

    a.label("L_prod")
    if o.prio_p: a(f"s_setprio {o.prio_p}")
    VOFF=8; VOFS=16; WAD=18; WS=20; TAD=22; TA2=23; ORA=24; CST=28; OUT=44; OUTS=60; RAW=64
    a("s_sub_u32 s41, s40, 4")
    a("v_and_b32 v5, 7, v2")
    a("v_lshrrev_b32 v6, 3, v2")
    a(f"v_mul_u32_u24 v7, {8*QROW}, v6")
    a(f"v_lshl_add_u32 v{VOFF}, v5, 4, v7")
    for j in range(1,8):
        a(f"v_add_u32 v{VOFF+j}, {j*QROW}, v{VOFF}")
    a("s_lshl_b32 s42, s41, 4")
    a("v_lshl_add_u32 v7, v6, 1, s42")
    a(f"v_mul_u32_u24 v7, {QROW}, v7")
    a(f"v_lshl_add_u32 v{VOFS}, v5, 4, v7")
    a(f"v_add_u32 v{VOFS+1}, {QROW}, v{VOFS}")
    for i,base in enumerate(("s41",4,8)):
        if i==0: a("s_add_u32 s52, s41, s33")
        elif i==1: a("s_add_u32 s53, s52, 4")
        else: a("s_add_u32 s54, s33, 8")
    for i in range(3):
        a(f"s_sub_u32 s42, s{52+i}, 9"); a(f"s_cmp_ge_u32 s{52+i}, 9"); a(f"s_cselect_b32 s{52+i}, s42, s{52+i}")
        a(f"s_mul_i32 s{52+i}, s{52+i}, {64*QROW}")
    a("s_lshl_b32 s39, s34, 2")
    for i in range(3): a(f"s_add_u32 s{52+i}, s{52+i}, s39")
    a("s_lshl_b32 s63, s32, 7")
    a("s_waitcnt lgkmcnt(0)")
    def adv():
        a("s_add_u32 s63, s63, 128"); a("s_cmp_eq_u32 s63, 1152"); a("s_cselect_b32 s63, 0, s63")
    def ld(ps,t,j,so,pro=-1):
        r=RAW+72*ps+32*t+4*j
        vo=VOFF+j if t<2 else VOFS+j
        a(f"buffer_load_dwordx4 v[{r}:{r+3}], v{vo}, s[20:23], {so} offen {o.ntb if pro<0 else ('nt' if pro<o.ntp else '')}")
    for ps in range(PA):
        for t in range(3):
            a(f"s_add_u32 s42, s{52+t}, s63")
            for j in range(8 if t<2 else 2): ld(ps,t,j,"s42",ps)
        adv()
    a("s_lshl_b32 s42, s41, 12")
    a(f"s_add_u32 s42, s42, {LDS_B}")
    a("v_lshrrev_b32 v7, 1, v6")
    a(f"v_lshlrev_b32 v{WAD}, 10, v7")
    a("v_and_b32 v7, 1, v6")
    a(f"v_lshl_add_u32 v{WAD}, v7, 9, v{WAD}")
    a(f"v_lshl_add_u32 v{WAD}, v5, 4, v{WAD}")
    a(f"v_add_u32 v{WAD}, s42, v{WAD}")
    a("s_lshl_b32 s42, s41, 10")
    a(f"s_add_u32 s42, s42, {LDS_B+32768}")
    a("v_lshrrev_b32 v7, 2, v6")
    a(f"v_lshlrev_b32 v{WS}, 9, v7")
    a("v_and_b32 v7, 3, v6")
    a(f"v_lshl_add_u32 v{WS}, v7, 2, v{WS}")
    a(f"v_lshl_add_u32 v{WS}, v5, 4, v{WS}")
    a(f"v_add_u32 v{WS}, s42, v{WS}")
    if TR:
        a(f"v_xor_b32 v{WAD+1}, 16, v{WAD}")
        a(f"v_xor_b32 v{WS+1}, 16, v{WS}")
    a(f"v_lshlrev_b32 v{TAD}, 5, v5")
    a(f"v_mov_b32 v{ORA}, 0"); a(f"v_mov_b32 v{ORA+1}, 0")
    a("s_lshl_b32 s61, s32, 8")
    a(f"v_add_u32 v{TA2}, s61, v{TAD}")
    a("s_mov_b32 s62, 9")
    a(f"s_mov_b32 s60, {PB}")
    a("s_barrier ;keep")
    a(f"ds_read_b128 v[{CST}:{CST+3}], v{TA2} offset:{LDS_T}")
    a(f"ds_read_b128 v[{CST+4}:{CST+7}], v{TA2} offset:{LDS_T+16}")
    a("s_waitcnt lgkmcnt(0)")
    tstamp(3)
    align(o.align)
    a.label("L_ploop")
    NL=18*PA
    for ps in range(2):
        rs=ps%PA
        CS=CST+8*ps; CC=CS+4; CN=CST+8*(1-ps)
        a(f"s_cmp_le_u32 s62, {PA}")
        a("s_cselect_b32 s22, 0, s22")
        a("s_add_u32 s61, s61, 256"); a("s_cmp_eq_u32 s61, 2304"); a("s_cselect_b32 s61, 0, s61")
        a(f"v_add_u32 v{TA2}, s61, v{TAD}")
        def grp(r0,r1,o_):
            for e in range(4):
                a(f"v_or3_b32 v{ORA+(e&1)}, v{ORA+(e&1)}, v{r0+e}, v{r1+e}")
                a(f"v_fma_mix_f32 v{r0+e}, v{r0+e}, v{CS+e}, v{CC+e} op_sel_hi:[1,0,0]")
                a(f"v_fma_mix_f32 v{r1+e}, v{r1+e}, v{CS+e}, v{CC+e} op_sel_hi:[1,0,0]")
                if e: a(f"v_cvt_pk_bf16_f32 v{o_(e-1)}, v{r0+e-1}, v{r1+e-1}")
            a(f"v_cvt_pk_bf16_f32 v{o_(3)}, v{r0+3}, v{r1+3}")
        for t in range(2):
            base=RAW+72*rs+32*t
            a(f"s_add_u32 s42, s{52+t}, s63")
            for jp in range(4):
                a(f"s_waitcnt vmcnt({NL-2})")
                if jp==0: tstamp(3)
                grp(base+8*jp,base+8*jp+4,lambda e:OUT+4*e+jp)
                if jp<3: ld(rs,t,2*jp,"s42"); ld(rs,t,2*jp+1,"s42")
                if jp==o.bpos:
                    if t==0:
                        a("s_cmp_eq_u32 s62, 9")
                        a(f"s_cbranch_scc1 L_skip{ps}")
                    a("s_waitcnt lgkmcnt(0)")
                    tstamp(3)
                    a("s_barrier")
                    if t==0:
                        a.label(f"L_skip{ps}")
                        a(f"ds_read_b128 v[{CN}:{CN+3}], v{TA2} offset:{LDS_T}")
                        a(f"ds_read_b128 v[{CN+4}:{CN+7}], v{TA2} offset:{LDS_T+16}")
            for e in range(4):
                wa=WAD+(e&1) if TR else WAD
                a(f"ds_write_b128 v{wa}, v[{OUT+4*e}:{OUT+4*e+3}] offset:{t*16384+(e>>1)*128+(e&1)*256}")
            ld(rs,t,6,"s42"); ld(rs,t,7,"s42")
        base=RAW+72*rs+64
        a("s_add_u32 s42, s54, s63")
        a(f"s_waitcnt vmcnt({NL-2})")
        grp(base,base+4,lambda e:OUTS+e)
        for e in range(4):
            wa=WS+(e&1) if TR else WS
            a(f"ds_write_b32 v{wa}, v{OUTS+e} offset:{(e>>1)*128+(e&1)*256}")
        ld(rs,2,0,"s42"); ld(rs,2,1,"s42")
        for w in ([WAD,WAD+1,WS,WS+1] if TR else [WAD,WS]):
            a(f"v_add_u32 v{w}, s60, v{w}")
        a("s_sub_u32 s60, 0, s60")
        adv()
        a("s_sub_u32 s62, s62, 1")
        a("s_cmp_lg_u32 s62, 0")
        if ps==0: a("s_cbranch_scc0 L_pdone")
        else: a("s_cbranch_scc1 L_ploop")
    a.label("L_pdone")
    a("s_waitcnt lgkmcnt(0)")
    a("s_barrier")
    a(f"v_or_b32 v{ORA}, v{ORA}, v{ORA+1}")
    a(f"v_cmp_lt_u32 vcc, 15, v{ORA}")
    a("s_lshl_b32 s42, s40, 2")
    a("s_cmp_lg_u64 vcc, 0")
    a("s_cselect_b32 s43, 1, 0")
    a("v_mov_b32 v7, s42"); a("v_mov_b32 v6, s43")
    a(f"ds_write_b32 v7, v6 offset:{LDS_F}")
    a("s_waitcnt lgkmcnt(0)")
    a("s_barrier")
    tdump(3)
    a("s_endpgm")

    a.label("L_slow")
    a("s_waitcnt vmcnt(0)")
    a("s_setreg_imm32_b32 hwreg(HW_REG_MODE, 4, 2), 3")
    a("v_and_b32 v3, 31, v2")
    a("v_lshrrev_b32 v4, 5, v2")
    a(f"v_mul_u32_u24 v5, {8*QROW}, v4")
    a("v_lshl_add_u32 v5, v3, 2, v5")
    a("v_lshlrev_b32 v6, 1, v3")
    a("v_lshlrev_b32 v7, 5, v1")
    a("v_lshl_add_u32 v7, v4, 2, v7")
    a(f"v_mul_u32_u24 v7, {OROW}, v7")
    a("v_add_u32 v7, v7, v6")
    a(f"s_mul_i32 s41, s30, {128*OROW}")
    a("v_add_u32 v7, s41, v7")
    a("s_mov_b32 s38, 0xffff0000")
    a("s_mov_b32 s62, 0")
    a.label("L_s1")
    a("s_lshl_b32 s41, s62, 5")
    a("s_add_u32 s41, s41, s34")
    a("s_lshl_b32 s42, s41, 1")
    a("buffer_load_ushort v8, v6, s[44:47], s42 offen")
    a("buffer_load_ushort v9, v6, s[48:51], s42 offen")
    a("s_lshl_b32 s35, s41, 2")
    a(f"s_add_u32 s36, s35, {576*QROW}")
    a(f"s_mul_i32 s43, s33, {64*QROW}")
    a("s_add_u32 s43, s43, s35")
    for r in range(16): a(f"v_mov_b32 v{ACA+r}, 0")
    a("s_waitcnt vmcnt(0)")
    a("v_lshlrev_b32 v8, 16, v8")
    a("v_lshlrev_b32 v9, 16, v9")
    a("s_mov_b32 s63, 0")
    a.label("L_s2")
    for j in range(8):
        a(f"s_add_u32 s61, s43, {j*QROW}")
        a(f"buffer_load_dword v{16+j}, v5, s[20:23], s61 offen")
    a(f"s_add_u32 s43, s43, {16*QROW}")
    a("s_cmp_eq_u32 s43, s36")
    a("s_cselect_b32 s43, s35, s43")
    a("s_set_gpr_idx_on s63, gpr_idx(SRC0)")
    for i in range(4): a(f"v_mov_b32 v{28+i}, v{AREG+i}")
    a("s_set_gpr_idx_off")
    a("s_waitcnt vmcnt(0)")
    for jp in range(4):
        x=16+2*jp; y=x+1
        a(f"v_cvt_f32_i32 v{x}, v{x}"); a(f"v_cvt_f32_i32 v{y}, v{y}")
        a(f"v_cvt_pk_bf16_f32 v{y}, v{x}, v{y}")
        a(f"v_lshlrev_b32 v{x}, 16, v{y}"); a(f"v_and_b32 v{y}, s38, v{y}")
        a(f"v_sub_f32 v{x}, v{x}, v9"); a(f"v_sub_f32 v{y}, v{y}, v9")
        a(f"v_cvt_pk_bf16_f32 v{y}, v{x}, v{y}")
        a(f"v_lshlrev_b32 v{x}, 16, v{y}"); a(f"v_and_b32 v{y}, s38, v{y}")
        a(f"v_mul_f32 v{x}, v{x}, v8"); a(f"v_mul_f32 v{y}, v{y}, v8")
        a(f"v_cvt_pk_bf16_f32 v{24+jp}, v{x}, v{y}")
    a("s_add_u32 s63, s63, 4")
    a("s_cmp_lg_u32 s63, 144")
    a(f"v_mfma_f32_32x32x16_bf16 v[{ACA}:{ACA+15}], v[28:31], v[24:27], v[{ACA}:{ACA+15}]")
    a("s_cbranch_scc1 L_s2")
    a("s_nop 7"); a("s_nop 7")
    for r in range(16):
        a(f"v_cvt_pk_bf16_f32 v{ACA+r}, v{ACA+r}, v{ACA+r}")
        a(f"s_add_u32 s61, s42, {(8*(r>>2)+(r&3))*OROW}")
        a(f"buffer_store_short v{ACA+r}, v7, s[24:27], s61 offen")
    a("s_add_u32 s62, s62, 1")
    a("s_cmp_lg_u32 s62, 9")
    a("s_cbranch_scc1 L_s1")
    a("s_branch L_fin")
    a.label("L_done")
    if o.abl:
        out=[]; inl=False
        for ln in a.l:
            if ln.startswith("L_cloop") or ln.startswith("L_ploop"): inl=True
            if ln.startswith("L_ctail") or ln.startswith("L_pdone"): inl=False
            t=ln.strip()
            if "bar" in o.abl and t=="s_barrier": continue
            if inl:
                if "rd" in o.abl and t.startswith("ds_read_b128") and " v14 " in t: continue
                if "mfma" in o.abl and t.startswith("v_mfma"): continue
                if "valu" in o.abl and (t.startswith("v_or3") or t.startswith("v_fma_mix") or (t.startswith("v_cvt_pk") and int(t.split()[1][1:-1])<64)): continue
                if "ld" in o.abl and t.startswith("buffer_load"): continue
                if "st" in o.abl and t.startswith("buffer_store"): continue
                if "wr" in o.abl and t.startswith("ds_write"): continue
                if "epi" in o.abl and (t.startswith("v_permlane") or (t.startswith("v_cvt_pk") and int(t.split()[1][1:-1])>=64)): continue
            out.append(ln)
        a.l=out
    body=a.text()
    return f"""; W4A16 GEMM (dequant fused). Generated by gen3.py
; @launch grid=(256,1,1) block=(512,1,1) lds={LDS_TOTAL}
.amdgcn_target "amdgcn-amd-amdhsa--gfx950"
.text
.globl {KN}
.p2align 8
.type {KN},@function
{KN}:
{body}    s_endpgm
.section .rodata,"a"
.p2align 6
.amdhsa_kernel {KN}
  .amdhsa_next_free_vgpr 256
  .amdhsa_next_free_sgpr 102
  .amdhsa_accum_offset 256
  .amdhsa_group_segment_fixed_size 0
  .amdhsa_kernarg_size 56
  .amdhsa_user_sgpr_count 2
  .amdhsa_user_sgpr_kernarg_segment_ptr 1
  .amdhsa_system_sgpr_workgroup_id_x 1
.end_amdhsa_kernel
""", LDS_TOTAL
if __name__=="__main__":
    ap=argparse.ArgumentParser()
    ap.add_argument("out"); ap.add_argument("--xmap",default="B"); ap.add_argument("--stmod",default="sc1")
    ap.add_argument("--pa",type=int,default=2); ap.add_argument("--stamps",action="store_true"); ap.add_argument("--trace",action="store_true")
    ap.add_argument("--prio_c",type=int,default=0); ap.add_argument("--prio_p",type=int,default=0)
    ap.add_argument("--depth",type=int,default=4); ap.add_argument("--align",type=int,default=6)
    ap.add_argument("--rot",default="p"); ap.add_argument("--abl",default=""); ap.add_argument("--tr",type=int,default=0)
    ap.add_argument("--nta",default=""); ap.add_argument("--ntb",default=""); ap.add_argument("--ntp",type=int,default=0); ap.add_argument("--fixdur",type=int,default=0); ap.add_argument("--nf",type=int,default=2); ap.add_argument("--bpos",type=int,default=0)
    x=ap.parse_args(); x.abl=[t for t in x.abl.split(",") if t]
    t,l=gen(x)
    open(x.out,"w").write(t); print("lds",l)
```

```python
import sys, argparse, copy, re
KN="standalone__w4a16_gemm_dequant__prompt_kernel"
XROW=1152; QROW=18432; OROW=9216

def R(p,b,n=1): return [f"{p}{b+i}" for i in range(n)]
def rng(p,b,n): return f"{p}{b}" if n==1 else f"{p}[{b}:{b+n-1}]"

def isize(t):
    m=t.split()[0]
    if m in ("s_waitcnt","s_nop","s_barrier","s_branch","s_endpgm","s_setprio","s_sleep") or m.startswith("s_cbranch"): return 4
    if m.startswith("s_load") or m.startswith("s_mem"): return 8
    def lit():
        for x in re.split(r"[ ,]+",t)[1:]:
            if re.fullmatch(r"-?\d+",x) and not -16<=int(x)<=64: return 4
            if re.fullmatch(r"0x[0-9a-f]+",x) and int(x,16)>64: return 4
        return 0
    if m.startswith("s_"): return 4+lit()
    if m.endswith("_e32"): return 4+lit()
    return 8

class Em:
    def __init__(s):
        s.l=[]; s.hist=[]
        s.vm_n=0; s.vm_done=0; s.lg_n=0; s.lg_done=0
        s.pend={}; s.slots=0; s.off=0
    def fork(s): return (list(s.hist), s.vm_n, s.vm_done, s.lg_n, s.lg_done, dict(s.pend), s.slots)
    def restore(s,st):
        s.hist=list(st[0]); s.vm_n,s.vm_done,s.lg_n,s.lg_done=st[1:5]; s.pend=dict(st[5]); s.slots=st[6]
    def label(s,t): s.l.append(t+":")
    def put(s,t,h,slots):
        m=t.split()[0]
        if m.endswith("_ex"):
            t=t.replace(m, m[:-3]+("_e32" if s.off%8 else "_e64"),1)
        s.l.append("    "+t); s.hist.append(h); s.hist=s.hist[-24:]; s.slots+=slots; s.off+=isize(t)
    def raw(s,t,states=1): s.put(t,("x",set(),set(),set(),states),states)
    def need(s,kind,reads,writes,srcc):
        n=0; dist=0
        for (k,r,w,c,st) in reversed(s.hist):
            req=0
            if k in ("valu","perm"):
                if kind=="mfma" and (w&reads): req=2
                if kind=="perm" and (w&reads): req=2
            if k=="mfma":
                if kind=="mfma":
                    if w&(reads-srcc): req=12
                    elif (w&srcc) and w!=srcc: req=10
                elif (w&reads) or (w&writes): req=12
                if kind in ("valu","perm") and (c&writes): req=max(req,7)
            if k=="m0w" and kind=="dma": req=1
            if k=="wst" and kind in ("valu","perm") and (r&writes): req=max(req,2)
            n=max(n,req-dist)
            dist+=st
            if dist>=14: break
        return n
    def op(s,t,kind,reads=(),writes=(),srcc=()):
        reads=set(reads)|set(srcc); writes=set(writes); srcc=set(srcc)
        for g in reads|writes:
            if g in s.pend:
                q,i=s.pend[g]
                done=s.vm_done if q=="vm" else s.lg_done
                assert i<done, f"pending reg {g} touched by: {t}"
                del s.pend[g]
        n=s.need(kind,reads,writes,srcc)
        if n>0: s.raw(f"s_nop {n-1}",n)
        s.put(t,(kind,reads,writes,srcc,1),2 if kind in ("mfma","perm") else 1)
    def valu(s,t,reads,writes): s.op(t,"valu",reads,writes)
    def vmem(s,t,reads=(),dst=(),kind="vmem"):
        s.op(t,kind,reads,dst)
        i=s.vm_n; s.vm_n+=1
        for g in dst: s.pend[g]=("vm",i)
        return i
    def ds(s,t,reads=(),dst=(),kind="ds"):
        s.op(t,kind,reads,dst)
        i=s.lg_n; s.lg_n+=1
        for g in dst: s.pend[g]=("lg",i)
        return i
    def wait(s,vm=None,lg=None):
        p=[]
        if vm is not None and vm>=s.vm_done:
            n=min(s.vm_n-vm-1,63); p.append(f"vmcnt({n})"); s.vm_done=s.vm_n-n
        if lg is not None and lg>=s.lg_done:
            n=min(s.lg_n-lg-1,15); p.append(f"lgkmcnt({n})"); s.lg_done=s.lg_n-n
        if p: s.raw("s_waitcnt "+" ".join(p))
    def text(s): return "\n".join(s.l)+"\n"

def gen(o):
    e=Em(); a=e.raw
    R1=o.r1; NB=o.nb; NF=o.nfr; stmod=o.stmod if o.stmod!="none" else ""
    NPOOL=32; LDS_TOTAL=163840
    VB=8; VA=16; VRD=17; VXW=21; VXR=22; VST=23; VSTT=24; VOR=25; VTR=27
    SP=28; CP=32; AF=36; XR=56; TT=72; RAW=88; PK=RAW+96; VEXT=216
    assert AF+4*NF<=XR and NB<=4 and R1<=4
    def accloc(b):
        if b<min(R1,3): return ("a",144+32*b)
        if b<R1: return ("v",VEXT)
        return ("v",RAW+32*((b-R1)%3))
    SA=50; SROW=60
    tr_n=[0]
    def tstamp():
        if not o.trace: return
        a("s_memtime s[98:99]"); a("s_waitcnt lgkmcnt(0)"); e.lg_done=e.lg_n
        a(f"v_writelane_b32 v{VTR}, s98, {tr_n[0]}"); tr_n[0]+=1
        assert tr_n[0]<59
    a("s_cmp_ge_u32 s2, 256")
    a("s_cbranch_scc1 L_done")
    if o.twice:
        a("s_mov_b32 s85, 0"); a("v_mov_b32 v254, v0")
        e.label("L_again")
        a("v_mov_b32 v0, v254")
    if o.stamps:
        a("s_memrealtime s[90:91]")
        a("s_memtime s[88:89]")
    a("s_load_dwordx2 s[12:13], s[0:1], 8")
    a("s_load_dwordx2 s[16:17], s[0:1], 16")
    a("s_load_dwordx2 s[20:21], s[0:1], 24")
    a("s_load_dwordx2 s[8:9], s[0:1], 0")
    a("s_load_dwordx2 s[4:5], s[0:1], 0")
    a("s_load_dwordx2 s[24:25], s[0:1], 32")
    a("v_lshrrev_b32 v1, 6, v0")
    a("v_and_b32 v2, 63, v0")
    a("s_lshr_b32 s29, s2, 3")
    a("v_readfirstlane_b32 s40, v1")
    if o.pretouch:
        a("s_getpc_b64 s[44:45]")
        e.label("L_pc")
        a("s_and_b32 s30, s29, 3")
        a("v_and_b32 v3, 15, v0")
        a("v_lshl_add_u32 v3, v1, 4, v3")
        a("s_lshl_b32 s30, s30, 6")
        a("v_add_u32 v3, s30, v3")
        a("v_lshlrev_b32 v3, 7, v3")
        a("v_min_u32 v3, L_fastend-L_pc, v3")
        a("s_mov_b64 exec, 0xffff")
        e.vmem("global_load_dword v255, v3, s[44:45]")
        a("s_mov_b64 exec, -1")
    a("s_and_b32 s28, s2, 7")
    a("s_and_b32 s30, s28, 1")
    a("s_lshl_b32 s30, s30, 5")
    a("s_add_u32 s29, s29, s30")
    a("s_cmp_eq_u32 s29, 63")
    a("s_cbranch_scc1 L_fin")
    a("s_mul_i32 s31, s29, 37")
    a("s_lshr_b32 s31, s31, 8")
    a("s_mul_i32 s30, s31, 7")
    a("s_sub_u32 s30, s29, s30")
    a("s_lshr_b32 s28, s28, 1")
    a("s_mul_i32 s28, s28, 9")
    a("s_add_u32 s31, s31, s28")
    a("s_and_b32 s41, s40, 1")
    a("s_lshr_b32 s42, s40, 1")
    for (d,sz) in ((8,2359296),(12,10616832),(16,9216),(20,9216),(24,18874368)):
        a(f"s_mov_b32 s{d+2}, {sz}"); a(f"s_mov_b32 s{d+3}, 0x20000")
    a("v_and_b32 v4, 15, v2")
    a("v_bfe_u32 v5, v2, 4, 1")
    a("v_lshrrev_b32 v6, 5, v2")
    a("v_lshlrev_b32 v7, 1, v5")
    a("v_add_u32 v7, v7, v6")
    a(f"v_mul_u32_u24 v7, {8*QROW}, v7")
    a(f"v_lshl_add_u32 v{VB}, v4, 4, v7")
    for j in range(1,8): a(f"v_add_u32 v{VB+j}, {j*QROW}, v{VB}")
    a("s_lshl_b32 s33, s31, 1")
    a("s_add_u32 s33, s33, s41")
    a("s_lshl_b32 s34, s33, 7")
    a("s_lshl_b32 s35, s33, 8")
    a(f"s_mul_i32 s36, s42, {32*QROW}")
    a("s_add_u32 s35, s35, s36")
    a(f"v_lshlrev_b32 v{VST}, 3, v4")
    a("v_lshrrev_b32 v7, 3, v0")
    a(f"v_mul_u32_u24 v{VA}, {XROW}, v7")
    a("v_lshrrev_b32 v7, 1, v7")
    a("v_xor_b32 v7, v7, v0")
    a("v_and_b32 v7, 7, v7")
    a(f"v_lshl_add_u32 v{VA}, v7, 4, v{VA}")
    a(f"s_mul_i32 s{SA}, s30, {288*XROW}")
    for b in range(1,10): a(f"s_add_u32 s{SA+b}, s{SA}, {32*b*XROW}")
    a("s_cmp_eq_u32 s30, 6")
    a("s_cselect_b32 s6, 2359296, 0")
    a("s_mov_b32 s7, 0x20000")
    a("s_lshl_b32 s43, s40, 10")
    a("s_waitcnt lgkmcnt(0)")
    iS=e.vmem(f"buffer_load_dwordx2 v[{AF+8}:{AF+9}], v{VST}, s[16:19], s34 offen",[],R("v",AF+8,2))
    iZ=e.vmem(f"buffer_load_dwordx2 v[{AF+10}:{AF+11}], v{VST}, s[20:23], s34 offen",[],R("v",AF+10,2))

    order=[(rb,c) for c in range(9) for rb in range(R1)]+[(b,c) for b in range(R1,10) for c in range(9)]
    NFR=2*len(order)
    VL=[]
    for c in range(9):
        A_=[("A",(rb,c)) for rb in range(R1)]; B_=[("B",c,j) for j in range(8)]
        VL+= (B_+A_) if c<o.bfirst else (A_+B_)
    VL+=[("A",(b,c)) for b in range(R1,10) for c in range(9)]
    st=dict(VL=VL, free=list(range(NPOOL)), slot={}, dma={}, rel=[], nbar=0, ok=set(), bbusy=set(), Bidx={},
            nrd=0, fidx={}, step=-1, busy={}, m0=None, lastv=-99,
            jobs=[], cur=None, DW=[], JQ=[], SQ=[], jk=0, xi={}, wl=None, lastst=-99, lastdw=-99, pkbusy={}, done_at={})
    def v_ok(it):
        if e.vm_n-e.vm_done>=60: return False
        if it[0]=="B": return (it[1]%NB,it[2]) not in st["bbusy"]
        c=it[1][1]
        return any(s_>0 or c==0 for s_ in st["free"])
    def v_pick():
        VL=st["VL"]
        if not VL: return None
        if v_ok(VL[0]): return 0
        if o.bypass and VL[0][0]=="B" and len(st["free"])>o.bypass:
            for i,it in enumerate(VL):
                if it[0]=="A" and it[1][0]>=R1: return i if v_ok(it) else None
        return None
    def v_m0(i):
        u=st["VL"][i][1]; c=u[1]
        sl=[s_ for s_ in st["free"] if s_>0 or c==0][0]
        st["free"].remove(sl); st["slot"][u]=sl
        e.op(f"s_add_u32 m0, s43, {sl*4096-128*c}","m0w")
        st["m0"]=u; del st["VL"][i]
    def v_dma():
        u=st["m0"]; b,c=u; st["m0"]=None
        st["dma"][u]=e.vmem(f"buffer_load_dwordx4 v{VA}, {'s[4:7]' if b==9 else 's[8:11]'}, s{SA+b} offen offset:{128*c} lds",[f"v{VA}"],[],"dma")
    def v_b(i):
        _,c,j=st["VL"][i]; del st["VL"][i]
        r=RAW+32*(c%NB)+4*j
        st["bbusy"].add((c%NB,j))
        st["Bidx"][(c,j)]=e.vmem(f"buffer_load_dwordx4 v[{r}:{r+3}], v{VB+j}, s[12:15], s35 offen",[f"v{VB+j}"],R("v",r,4))
        if j==7 and c<8: a(f"s_add_u32 s35, s35, {64*QROW}")
    def vpump(mid=None):
        i=v_pick()
        if i is None: return False
        if st["VL"][i][0]=="A":
            v_m0(i)
            if mid: mid()
            v_dma()
        else: v_b(i)
        st["lastv"]=e.slots
        return True
    for _ in range(o.p0): assert vpump()
    PRE=[]
    p=PRE.append
    p("v_and_b32 v3, 31, v2")
    p("s_lshl_b32 s36, s42, 4")
    p("v_xor_b32 v3, s36, v3")
    p("v_bfe_u32 v7, v3, 1, 3")
    p("s_lshl_b32 s36, s42, 2")
    p("v_add_u32 v0, s36, v6")
    p("v_xor_b32 v7, v7, v0")
    p("v_lshlrev_b32 v3, 7, v3")
    p(f"v_lshl_add_u32 v{VRD}, v7, 4, v3")
    p(f"v_xor_b32 v{VRD+1}, 32, v{VRD}")
    p(f"v_add_u32 v{VRD+2}, 0x10000, v{VRD}")
    p(f"v_add_u32 v{VRD+3}, 0x10000, v{VRD+1}")
    p("s_lshl_b32 s36, s40, 12")
    p("s_add_u32 s36, s36, 0x20000")
    p(f"v_lshl_add_u32 v{VXW}, v2, 4, s36")
    p(f"v_xor_b32 v{VXR}, 0x2000, v{VXW}")
    p("s_mul_i32 s36, s30, 288")
    p("s_lshl_b32 s37, s42, 4")
    p("s_add_u32 s36, s36, s37")
    p("v_lshl_add_u32 v3, v6, 2, s36")
    p(f"v_mul_u32_u24 v3, {OROW}, v3")
    p(f"v_lshl_add_u32 v{VST}, v5, 2, v{VST}")
    p(f"v_add3_u32 v{VST}, v{VST}, v3, s34")
    for r in range(8): p(f"s_mov_b32 s{SROW+r}, {(8*(r>>2)+(r&3))*OROW}")
    p(f"v_mov_b32 v{VOR}, 0"); p(f"v_mov_b32 v{VOR+1}, 0")
    p("s_mov_b32 s37, 0x4b800000")
    p("s_mov_b32 s38, 0xffff0000")
    p("s_mov_b64 s[46:47], 0")
    p("s_mov_b32 s68, 0x41000000")
    p("s_mov_b32 s69, 0x41800000")
    p("s_mov_b32 s70, 0x0dffffff")
    p("s_mov_b32 s71, 0x7fffffff")
    p("s_mov_b32 s72, 0x71800000")
    p(None)
    S=AF; Z=AF+4
    for i in range(4):
        sr=AF+8+(i>>1); zr=AF+10+(i>>1)
        if i&1:
            p(f"v_and_b32 v{S+i}, s38, v{sr}"); p(f"v_and_b32 v{Z+i}, s38, v{zr}")
        else:
            p(f"v_lshlrev_b32 v{S+i}, 16, v{sr}"); p(f"v_lshlrev_b32 v{Z+i}, 16, v{zr}")
        p(f"v_mul_f32 v{CP+i}, -v{Z+i}, v{S+i}")
        p(f"v_mul_f32 v{SP+i}, s37, v{S+i}")
    for i in range(4):
        p(f"v_mul_f32 v3, s68, v{Z+i}")
        p("v_rndne_f32 v7, v3")
        p("v_cmp_neq_f32 vcc, v3, v7")
        p("s_or_b64 s[46:47], s[46:47], vcc")
        p(f"v_cmp_nle_f32 vcc, |v{Z+i}|, s69")
        p("s_or_b64 s[46:47], s[46:47], vcc")
        p(f"v_and_b32 v3, s71, v{Z+i}")
        p("v_add_u32 v3, -1, v3")
        p("v_cmp_gt_u32 vcc, s70, v3")
        p("s_or_b64 s[46:47], s[46:47], vcc")
        p(f"v_and_b32 v3, s71, v{S+i}")
        p("v_cmp_le_u32 vcc, s72, v3")
        p("s_or_b64 s[46:47], s[46:47], vcc")
        p("v_add_u32 v3, -1, v3")
        p("v_cmp_gt_u32 vcc, s70, v3")
        p("s_or_b64 s[46:47], s[46:47], vcc")
    for t in PRE:
        if t is None:
            e.wait(vm=iZ)
            for g in R("v",AF+8,4): e.pend.pop(g,None)
        else: a(t)
        if e.slots-st["lastv"]>=o.vi0: vpump()
    tstamp()
    e.l.append("    .p2align 3"); e.label("L_p1"); e.off=0
    e.l.append(";P1")

    def barrier(need_units, lg=None):
        w=-1
        for u in need_units:
            assert u in st["dma"], f"unit {u} not issued before barrier {st['nbar']}"
            w=max(w,st["dma"][u])
        e.wait(vm=w if w>=0 else None, lg=lg)
        a("s_barrier")
        st["nbar"]+=1
        st["ok"]|=set(need_units)
        for u in st["rel"]: st["free"].append(st["slot"][u])
        st["rel"]=[]
    def rpump(n):
        k=0
        while k<n:
            f=st["nrd"]
            if f>=NFR or f>(st["step"]-1)//2+NF: break
            u=order[f//2]; ts=f&1
            if u not in st["ok"]: break
            sl=st["slot"][u]; dst=AF+4*(f%NF)
            st["fidx"][f]=e.ds(f"ds_read_b128 v[{dst}:{dst+3}], v{VRD+ts+2*(sl>>4)} offset:{(sl&15)*4096}",[f"v{VRD+ts+2*(sl>>4)}"],R("v",dst,4))
            st["nrd"]+=1; k+=1
        return k
    def mfma():
        s_=st["step"]+1; st["step"]=s_
        f=s_//2; cb=s_&1; (b,c)=order[f//2]; ts=f&1
        assert f in st["fidx"], f"fragment {f} of unit {(b,c)} not read at step {s_}"
        e.wait(lg=st["fidx"][f])
        af=AF+4*(f%NF)
        p_,base=accloc(b); base+=16*cb
        acc=R(p_,base,16); first=(c==0 and ts==0)
        if first:
            assert st["busy"].get((p_,base)) is None, f"acc {p_}{base} still busy with block {st['busy'].get((p_,base))} at block {b}"
            st["busy"][(p_,base)]=b
        bb=16*c+8*ts+4*cb
        e.op(f"v_mfma_f32_32x32x16_bf16 {rng(p_,base,16)}, v[{af}:{af+3}], a[{bb}:{bb+3}], {'0' if first else rng(p_,base,16)}",
             "mfma",R("v",af,4)+R("a",bb,4),acc,[] if first else acc)
        if ts==1 and cb==0: st["rel"].append((b,c))
        if c==8 and ts==1 and cb==1: st["jobs"].append(b); st["done_at"][b]=s_
    def emit(it):
        k=it[0]
        if k=="v": e.valu(it[1],it[2],it[3])
        elif k=="perm": e.op(f"v_permlane16_swap_b32_ex v{it[1]}, v{it[2]}","perm",[f"v{it[1]}",f"v{it[2]}"],[f"v{it[1]}",f"v{it[2]}"])
        elif k=="wb": e.wait(vm=st["Bidx"][it[1]])
        elif k=="bfree":
            st["bbusy"].discard(it[1])
        elif k=="bar1":
            tstamp()
            barrier([(rb,it[1]) for rb in range(R1)])
        elif k=="dw":
            st["wl"]=e.ds(f"ds_write_b128 v{VXW}, {rng(it[1],it[2],4)} offset:{it[3]}",[f"v{VXW}"]+R(it[1],it[2],4),[],"wst")
        elif k=="xr":
            i=it[1]; st["xi"][i]=e.ds(f"ds_read_b128 v[{XR+4*i}:{XR+4*i+3}], v{VXR} offset:{it[2]}",[f"v{VXR}"],R("v",XR+4*i,4))
        elif k=="wx": e.wait(lg=st["xi"][it[1]])
        elif k=="afree":
            st["busy"][(it[1],it[2])]=None; st["busy"][(it[1],it[2]+16)]=None
        elif k=="pk":
            while st["pkbusy"].get(it[1]): emit(st["SQ"].pop(0))
            st["pkbusy"][it[1]]=True
        elif k=="pkfree": st["pkbusy"][it[1]]=False
        elif k=="sq": st["SQ"]+=it[1]
        elif k=="st":
            e.vmem(f"buffer_store_dword v{it[1]}, v{VSTT}, s[24:27], s{SROW+it[2]} offen {stmod}",[f"v{it[1]}",f"v{VSTT}"])
        else: raise Exception(k)
    def dq_list(c):
        rb_=RAW+32*(c%NB); L=[]
        def V(t,r,w): L.append(("v",t,r,w))
        L.append(("wb",(c,1)))
        bpos=o.bpos0 if c==0 else o.bpos
        if bpos==0: L.append(("bar1",c))
        for jp in range(4):
            for ee in range(4):
                k=ee&1; x=rb_+8*jp+ee; y=x+4
                V(f"v_or3_b32 v{VOR+k}, v{VOR+k}, v{x}, v{y}",[f"v{VOR+k}",f"v{x}",f"v{y}"],[f"v{VOR+k}"])
                V(f"v_fma_mix_f32 v{x}, v{x}, v{SP+ee}, v{CP+ee} op_sel_hi:[1,0,0]",[f"v{x}"],[f"v{x}"])
                V(f"v_fma_mix_f32 v{y}, v{y}, v{SP+ee}, v{CP+ee} op_sel_hi:[1,0,0]",[f"v{y}"],[f"v{y}"])
            for ee in (0,2,1,3):
                x=rb_+8*jp+ee; y=x+4
                V(f"v_cvt_pk_bf16_f32 v{x}, v{x}, v{y}",[f"v{x}",f"v{y}"],[f"v{x}"])
            L.append(("bfree",(c%NB,2*jp+1)))
            x=rb_+8*jp
            def AW(ee):
                d=16*c+4*(ee&1)+8*(ee>>1)+jp
                V(f"v_accvgpr_write_b32 a{d}, v{x+ee}",[f"v{x+ee}"],[f"a{d}"])
            L.append(("perm",x,x+2)); AW(0)
            if jp<3: L.append(("wb",(c,2*jp+3)))
            L.append(("perm",x+1,x+3)); AW(2); AW(1); AW(3)
            L.append(("bfree",(c%NB,2*jp)))
            if bpos==jp+1: L.append(("bar1",c))
        return L

    for s_ in range(9):
        L=dq_list(s_)
        M=4*R1 if s_>0 else 0
        def fill(n):
            t0=e.slots
            while L and e.slots-t0<n:
                if e.slots-st["lastv"]>=o.vi:
                    vpump(mid=(lambda: emit(L.pop(0))) if L[0][0]=="v" else None)
                    if not L: break
                emit(L.pop(0))
                rpump(1)
        if M==0: fill(10**6)
        else:
            tot=100+11*2//1
            for m in range(M):
                fill(o.q1 if o.q1 else max(6,(100+8+2*R1+2*R1)//M))
                mfma(); rpump(1)
            fill(10**6)
    tstamp()

    e.l.append(";P2")
    S2=36*R1
    XS=o.xs; YS=o.xs+18
    def bar_steps():
        L=[S2-4*R1+o.zs]
        for b in range(R1,10): L+=[S2+36*(b-R1)+XS, S2+36*(b-R1)+YS]
        return L
    BS=bar_steps()
    def job_start():
        b=st["jobs"].pop(0); st["cur"]=b
        p_,base=accloc(b); off=16384*(st["jk"]&1)
        st["DW"]=[("dw",p_,base+16*(i>>1)+8+4*(i&1),off+1024*i) for i in range(4)]
    def job_post(G):
        b=st["cur"]; st["cur"]=None
        p_,base=accloc(b); off=16384*(st["jk"]&1); pk=st["jk"]%4; st["jk"]+=1
        P=PK+8*pk; L=[]
        for i in (0,2,1,3): L.append((G,("xr",i,off+1024*i)))
        if p_=="a":
            K=[TT,TT+8]
            for h in range(2):
                for cb in range(2):
                    for r in range(4*h,4*h+4):
                        L.append((G,("v",f"v_accvgpr_read_b32 v{TT+8*cb+r}, a{base+16*cb+r}",[f"a{base+16*cb+r}"],[f"v{TT+8*cb+r}"])))
        else: K=[base,base+16]
        G2=G+o.jd
        L.append((G2,("pk",pk)))
        for h in range(2):
            for cb in range(2):
                i=2*cb+h
                L.append((G2,("wx",i)))
                for q in range(4):
                    k=K[cb]+4*h+q; x=XR+4*i+q
                    L.append((G2,("v",f"v_add_f32_ex v{k}, v{k}, v{x}",[f"v{k}",f"v{x}"],[f"v{k}"])))
            for r in range(4*h,4*h+4):
                L.append((G2,("v",f"v_cvt_pk_bf16_f32 v{P+r}, v{K[0]+r}, v{K[1]+r}",[f"v{K[0]+r}",f"v{K[1]+r}"],[f"v{P+r}"])))
            SL=[]
            if h==0: SL.append(("v",f"v_add_u32 v{VSTT}, {32*b*OROW if b else '0x0'}, v{VST}" if b else f"v_mov_b32_ex v{VSTT}, v{VST}",[f"v{VST}"],[f"v{VSTT}"]))
            SL+=[("st",P+r,r) for r in range(4*h,4*h+4)]
            if h==1: SL.append(("pkfree",pk))
            L.append((G2,("sq",SL)))
        L.append((G2,("afree",p_,base)))
        st["JQ"]+=L
    def light(G,t_end):
        while st["JQ"] and st["JQ"][0][0]<=G and e.slots<t_end: emit(st["JQ"].pop(0)[1])
    def one_light(G):
        t0=e.slots
        while st["JQ"] and st["JQ"][0][0]<=G and e.slots==t0: emit(st["JQ"].pop(0)[1])
    def gap():
        mfma()
        G=st["step"]; t_end=e.slots+o.nf-(1 if G&1 else 0)
        nr=rpump(o.rmax)
        if st["cur"] is None and st["jobs"] and G>=st["done_at"][st["jobs"][0]]+o.wx: job_start()
        heavy=0
        if st["DW"] and G-st["lastdw"]>=o.dg and (nr==0 or o.dg==1):
            emit(st["DW"].pop(0)); st["lastdw"]=G; heavy+=1
        if heavy<o.hv and e.slots-st["lastv"]>=o.vi2 and vpump(mid=lambda: one_light(G)): heavy+=1
        while st["SQ"] and st["SQ"][0][0]!="st": emit(st["SQ"].pop(0))
        if heavy<o.hv and st["SQ"] and G-st["lastst"]>=o.sg:
            emit(st["SQ"].pop(0)); st["lastst"]=G; heavy+=1
            while st["SQ"] and st["SQ"][0][0]=="pkfree": emit(st["SQ"].pop(0))
        light(G,t_end)
        if G in BS:
            i=BS.index(G); nxt=BS[i+1] if i+1<len(BS) else 10**6
            fmax=min(NFR-1,(nxt-1)//2+NF)
            need=[u for u in order[:fmax//2+1] if u not in st["ok"]]
            serve=st["cur"] is not None and not st["DW"]
            if serve:
                while st["JQ"]: emit(st["JQ"].pop(0)[1])
            tstamp()
            barrier(need, lg=st["wl"] if serve else None)
            if serve: job_post(G)
    def tail():
        while st["JQ"]: emit(st["JQ"].pop(0)[1])
        fs=st["free"][0]
        e.valu(f"v_or_b32_e32 v{VOR}, v{VOR}, v{VOR+1}",[],[])
        a(f"v_cmp_lt_u32_e32 vcc, 15, v{VOR}")
        a("s_or_b64 s[48:49], s[46:47], vcc")
        a("s_cmp_lg_u64 s[48:49], 0")
        a("s_cselect_b32 s36, 1, 0")
        a(f"v_lshlrev_b32_e32 v3, 2, v1"); a("v_mov_b32_e32 v4, s36")
        a(f"v_add_u32_e32 v3, {fs*4096}, v3"); a(f"v_mov_b32_e32 v5, {fs*4096}")
        e.ds("ds_write_b32 v3, v4")
        first=True
        while st["jobs"] or st["cur"] is not None:
            if st["cur"] is None: job_start()
            while st["DW"]:
                emit(st["DW"].pop(0))
                if st["SQ"]: emit(st["SQ"].pop(0))
            w=e.lg_n-1
            while st["SQ"]: emit(st["SQ"].pop(0))
            barrier([],lg=w)
            job_post(0)
            for _ in range(4): emit(st["JQ"].pop(0)[1])
            if first:
                fl=e.ds("ds_read_b128 v[4:7], v5",[],R("v",4,4)); first=False
            while st["JQ"]:
                emit(st["JQ"].pop(0)[1])
                while st["SQ"]: emit(st["SQ"].pop(0))
        e.wait(lg=fl)
        e.valu("v_or3_b32 v4, v4, v5, v6",R("v",4,4),["v4"])
        a("v_or_b32_e32 v4, v4, v7")
        a("s_nop 0")
        a("v_readfirstlane_b32_e32 s36, v4")
        tstamp()
        a("s_cmp_lg_u32 s36, 0")
        a("s_cbranch_scc1 L_slow")
    while st["step"]<36*9-1: gap()
    a("s_cmp_eq_u32 s30, 6")
    a("s_cbranch_scc1 L_ten")
    sv=(e.fork(), copy.deepcopy(st), tr_n[0])
    tail()
    a("s_branch L_fin")
    e.restore(sv[0]); st.clear(); st.update(sv[1]); tr_n[0]=sv[2]
    e.label("L_ten")
    while st["step"]<36*10-1: gap()
    tail()
    if not o.abl:
        e.l.append(f".if (.-L_p1) != {e.off}\n.error \"size model mismatch\"\n.endif")
    e.label("L_fin")
    if o.twice:
        a("s_waitcnt vmcnt(0) lgkmcnt(0)"); a("s_barrier")
        a("s_add_u32 s85, s85, 1"); a("s_cmp_eq_u32 s85, 1"); a("s_cbranch_scc1 L_again")
    if o.trace:
        a("s_load_dwordx2 s[92:93], s[0:1], 48"); a("s_mov_b32 s94, 0x1000000"); a("s_mov_b32 s95, 0x20000"); a("s_waitcnt lgkmcnt(0)")
        a("s_lshl_b32 s98, s2, 3"); a("s_add_u32 s98, s98, s40"); a("s_lshl_b32 s98, s98, 8"); a("s_add_u32 s98, s98, 65536")
        a("v_lshlrev_b32 v4, 2, v2")
        a(f"v_writelane_b32 v{VTR}, s88, 59")
        a(f"buffer_store_dword v{VTR}, v4, s[92:95], s98 offen")
    if o.stamps:
        a("s_load_dwordx2 s[92:93], s[0:1], 48")
        a("s_waitcnt vmcnt(0)")
        a("s_barrier")
        a("s_cmp_lg_u32 s40, 0"); a("s_cbranch_scc1 L_done")
        a("s_memrealtime s[96:97]")
        a("s_memtime s[86:87]")
        a("s_mov_b32 s94, 65536"); a("s_mov_b32 s95, 0x20000")
        a("s_waitcnt lgkmcnt(0)")
        a("v_mov_b32 v10, s90"); a("v_mov_b32 v11, s91"); a("v_mov_b32 v12, s96"); a("v_mov_b32 v13, s97")
        a("s_lshl_b32 s98, s2, 5"); a("v_mov_b32 v14, 0")
        a("buffer_store_dwordx4 v[10:13], v14, s[92:95], s98 offen")
        a("s_sub_u32 s86, s86, s88"); a("s_subb_u32 s87, s87, s89")
        a("v_mov_b32 v10, s86"); a("v_mov_b32 v11, s87")
        a("buffer_store_dwordx2 v[10:11], v14, s[92:95], s98 offen offset:16")
    e.label("L_fastend")
    a("s_endpgm")

    e.label("L_slow")
    ACA=32
    a("s_waitcnt vmcnt(0) lgkmcnt(0)")
    a("s_setreg_imm32_b32 hwreg(HW_REG_MODE, 4, 2), 3")
    a("v_and_b32 v3, 31, v2")
    a("v_lshrrev_b32 v4, 5, v2")
    a(f"v_mul_u32_u24 v5, {8*QROW}, v4")
    a("v_lshl_add_u32 v5, v3, 2, v5")
    a("v_lshlrev_b32 v6, 1, v3")
    a("s_lshl_b32 s36, s42, 4")
    a("v_xor_b32 v10, s36, v3")
    a(f"v_mul_u32_u24 v10, {XROW}, v10")
    a("v_lshl_add_u32 v10, v4, 4, v10")
    a("s_mul_i32 s37, s30, 288")
    a("s_add_u32 s36, s36, s37")
    a("v_lshl_add_u32 v7, v4, 2, s36")
    a(f"v_mul_u32_u24 v7, {OROW}, v7")
    a("v_add_u32 v7, v7, v6")
    a("s_mov_b32 s38, 0xffff0000")
    a("s_cmp_eq_u32 s30, 6")
    a("s_cselect_b32 s75, 10, 9")
    a("s_mov_b32 s73, 0")
    e.label("L_s1")
    a("s_lshl_b32 s76, s73, 6")
    a("s_add_u32 s76, s76, s34")
    a("buffer_load_ushort v8, v6, s[16:19], s76 offen")
    a("buffer_load_ushort v9, v6, s[20:23], s76 offen")
    a("s_mov_b32 s74, 0")
    a("s_waitcnt vmcnt(0)")
    a("v_lshlrev_b32 v8, 16, v8")
    a("v_lshlrev_b32 v9, 16, v9")
    e.label("L_s2")
    a("s_lshl_b32 s77, s76, 1")
    a(f"s_mul_i32 s78, s74, {32*XROW}")
    a(f"s_add_u32 s78, s78, s{SA}")
    for r in range(16): a(f"v_mov_b32 v{ACA+r}, 0")
    a("s_mov_b32 s79, 0")
    e.label("L_s3")
    for j in range(8):
        a(f"s_add_u32 s80, s77, {j*QROW}")
        a(f"buffer_load_dword v{16+j}, v5, s[12:15], s80 offen")
    a("buffer_load_dwordx4 v[28:31], v10, s[8:11], s78 offen")
    a(f"s_add_u32 s77, s77, {16*QROW}")
    a("s_add_u32 s78, s78, 32")
    a("s_waitcnt vmcnt(0)")
    for jp in range(4):
        x=16+2*jp; y=x+1
        a(f"v_cvt_f32_i32 v{x}, v{x}"); a(f"v_cvt_f32_i32 v{y}, v{y}")
        a(f"v_cvt_pk_bf16_f32 v{y}, v{x}, v{y}")
        a(f"v_lshlrev_b32 v{x}, 16, v{y}"); a(f"v_and_b32 v{y}, s38, v{y}")
        a(f"v_sub_f32 v{x}, v{x}, v9"); a(f"v_sub_f32 v{y}, v{y}, v9")
        a(f"v_cvt_pk_bf16_f32 v{y}, v{x}, v{y}")
        a(f"v_lshlrev_b32 v{x}, 16, v{y}"); a(f"v_and_b32 v{y}, s38, v{y}")
        a(f"v_mul_f32 v{x}, v{x}, v8"); a(f"v_mul_f32 v{y}, v{y}, v8")
        a(f"v_cvt_pk_bf16_f32 v{24+jp}, v{x}, v{y}")
    a("s_add_u32 s79, s79, 1")
    a("s_cmp_lg_u32 s79, 36")
    a(f"v_mfma_f32_32x32x16_bf16 v[{ACA}:{ACA+15}], v[28:31], v[24:27], v[{ACA}:{ACA+15}]")
    a("s_cbranch_scc1 L_s3")
    a(f"s_mul_i32 s78, s74, {32*OROW}")
    a("s_add_u32 s78, s78, s76")
    a("s_nop 7"); a("s_nop 7")
    for r in range(8):
        a(f"v_cvt_pk_bf16_f32 v{ACA+r}, v{ACA+r}, v{ACA+r}")
        a(f"s_add_u32 s80, s78, s{SROW+r}")
        a(f"buffer_store_short v{ACA+r}, v7, s[24:27], s80 offen")
    a("s_add_u32 s74, s74, 1")
    a("s_cmp_lg_u32 s74, s75")
    a("s_cbranch_scc1 L_s2")
    a("s_add_u32 s73, s73, 1")
    a("s_cmp_lg_u32 s73, 2")
    a("s_cbranch_scc1 L_s1")
    a("s_branch L_fin")
    e.label("L_done")
    if o.abl:
        pats=dict(rd=r"ds_read_b128 v\[\d+:\d+\], v(17|18|19|20) ", dma=r" lds$", st=r"buffer_store_dword v\d+, v24", bar=r"s_barrier",
                  xw=r"ds_write_b128", xr=r"ds_read_b128 v\[\d+:\d+\], v22", mf=r"v_mfma", va=r"v_(add_f32|cvt_pk|accvgpr|or3|fma_mix|perml)", bl=r"buffer_load_dwordx4 v\[", wv=r"s_waitcnt vmcnt\(\d+\)( lgkmcnt\(\d+\))?$")
        L=[]; ph=0
        for t in e.l:
            if t==";P1": ph=1
            if t==";P2": ph=2
            if t=="L_fin:": ph=3
            drop=False
            for f in o.abl.split(","):
                if int(f[0])==ph and re.search(pats[f[1:]],t): drop=True
            if not drop: L.append(t)
        e.l=L
    body=e.text()
    return f"""; W4A16 GEMM (dequant fused). Generated by gen5.py
; @launch grid=(256,1,1) block=(256,1,1) lds={LDS_TOTAL}
.amdgcn_target "amdgcn-amd-amdhsa--gfx950"
.text
.globl {KN}
.p2align 8
.type {KN},@function
{KN}:
{body}    s_endpgm
.section .rodata,"a"
.p2align 6
.amdhsa_kernel {KN}
  .amdhsa_next_free_vgpr 512
  .amdhsa_next_free_sgpr 102
  .amdhsa_accum_offset 256
  .amdhsa_group_segment_fixed_size 0
  .amdhsa_kernarg_size 56
  .amdhsa_user_sgpr_count 2
  .amdhsa_user_sgpr_kernarg_segment_ptr 1
  .amdhsa_system_sgpr_workgroup_id_x 1
.end_amdhsa_kernel
""", LDS_TOTAL
if __name__=="__main__":
    ap=argparse.ArgumentParser()
    ap.add_argument("out"); ap.add_argument("--stmod",default="sc1")
    ap.add_argument("--stamps",action="store_true"); ap.add_argument("--trace",action="store_true")
    ap.add_argument("--twice",action="store_true"); ap.add_argument("--abl",default="")
    for k,d in dict(r1=3,nb=4,nfr=5,xs=9,zs=2,wx=2,jd=4,nf=6,hv=1,sg=2,dg=2,rmax=1,vi=8,vi0=8,vi2=12,p0=22,bfirst=1,bpos=0,bpos0=3,q1=0,bypass=0,pretouch=1).items():
        ap.add_argument("--"+k,type=int,default=d)
    x=ap.parse_args()
    t,l=gen(x)
    open(x.out,"w").write(t); print("lds",l)
```

```python
import sys, argparse, copy, re
KN="standalone__w4a16_gemm_dequant__prompt_kernel"
XROW=1152; QROW=18432; OROW=9216

def R(p,b,n=1): return [f"{p}{b+i}" for i in range(n)]
def rng(p,b,n): return f"{p}{b}" if n==1 else f"{p}[{b}:{b+n-1}]"

def isize(t):
    m=t.split()[0]
    if m in ("s_waitcnt","s_nop","s_barrier","s_branch","s_endpgm","s_setprio","s_sleep") or m.startswith("s_cbranch"): return 4
    if m.startswith("s_load") or m.startswith("s_mem"): return 8
    def lit():
        for x in re.split(r"[ ,]+",t)[1:]:
            if re.fullmatch(r"-?\d+",x) and not -16<=int(x)<=64: return 4
            if re.fullmatch(r"0x[0-9a-f]+",x) and int(x,16)>64: return 4
        return 0
    if m.startswith("s_"): return 4+lit()
    if m.endswith("_e32"): return 4+lit()
    return 8

class Em:
    def __init__(s):
        s.l=[]; s.hist=[]
        s.vm_n=0; s.vm_done=0; s.lg_n=0; s.lg_done=0
        s.pend={}; s.slots=0; s.off=0
    def fork(s): return (list(s.hist), s.vm_n, s.vm_done, s.lg_n, s.lg_done, dict(s.pend), s.slots)
    def restore(s,st):
        s.hist=list(st[0]); s.vm_n,s.vm_done,s.lg_n,s.lg_done=st[1:5]; s.pend=dict(st[5]); s.slots=st[6]
    def label(s,t): s.l.append(t+":")
    def put(s,t,h,slots):
        m=t.split()[0]
        if m.endswith("_ex"):
            t=t.replace(m, m[:-3]+("_e32" if s.off%8 else "_e64"),1)
        s.l.append("    "+t); s.hist.append(h); s.hist=s.hist[-24:]; s.slots+=slots; s.off+=isize(t)
    def raw(s,t,states=1): s.put(t,("x",set(),set(),set(),states),states)
    def need(s,kind,reads,writes,srcc):
        n=0; dist=0
        for (k,r,w,c,st) in reversed(s.hist):
            req=0
            if k in ("valu","perm"):
                if kind=="mfma" and (w&reads): req=2
                if kind=="perm" and (w&reads): req=2
            if k=="mfma":
                if kind=="mfma":
                    if w&(reads-srcc): req=12
                    elif (w&srcc) and w!=srcc: req=10
                elif (w&reads) or (w&writes): req=12
                if kind in ("valu","perm") and (c&writes): req=max(req,7)
            if k=="m0w" and kind=="dma": req=1
            if k=="wst" and kind in ("valu","perm") and (r&writes): req=max(req,2)
            n=max(n,req-dist)
            dist+=st
            if dist>=14: break
        return n
    def op(s,t,kind,reads=(),writes=(),srcc=()):
        reads=set(reads)|set(srcc); writes=set(writes); srcc=set(srcc)
        for g in reads|writes:
            if g in s.pend:
                q,i=s.pend[g]
                done=s.vm_done if q=="vm" else s.lg_done
                assert i<done, f"pending reg {g} touched by: {t}"
                del s.pend[g]
        n=s.need(kind,reads,writes,srcc)
        if n>0: s.raw(f"s_nop {n-1}",n)
        s.put(t,(kind,reads,writes,srcc,1),2 if kind in ("mfma","perm") else 1)
    def valu(s,t,reads,writes): s.op(t,"valu",reads,writes)
    def vmem(s,t,reads=(),dst=(),kind="vmem"):
        s.op(t,kind,reads,dst)
        i=s.vm_n; s.vm_n+=1
        for g in dst: s.pend[g]=("vm",i)
        return i
    def ds(s,t,reads=(),dst=(),kind="ds"):
        s.op(t,kind,reads,dst)
        i=s.lg_n; s.lg_n+=1
        for g in dst: s.pend[g]=("lg",i)
        return i
    def wait(s,vm=None,lg=None):
        p=[]
        if vm is not None and vm>=s.vm_done:
            n=min(s.vm_n-vm-1,63); p.append(f"vmcnt({n})"); s.vm_done=s.vm_n-n
        if lg is not None and lg>=s.lg_done:
            n=min(s.lg_n-lg-1,15); p.append(f"lgkmcnt({n})"); s.lg_done=s.lg_n-n
        if p: s.raw("s_waitcnt "+" ".join(p))
    def text(s): return "\n".join(s.l)+"\n"

def gen(o):
    e=Em(); a=e.raw
    R1=o.r1; NB=o.nb; NF=o.nfr; stmod=o.stmod if o.stmod!="none" else ""
    NPOOL=32; LDS_TOTAL=163840
    VB=8; VA=16; VRD=17; VXW=21; VXR=22; VST=23; VSTT=24; VOR=25; VTR=27
    SP=28; CP=32; AF=36; XR=56; TT=72; RAW=88; PK=RAW+96; VEXT=216
    assert AF+4*NF<=XR and NB<=4 and R1<=4
    def accloc(b):
        if b<min(R1,3): return ("a",144+32*b)
        if b<R1: return ("v",VEXT)
        return ("v",RAW+32*((b-R1)%3))
    SA=50; SROW=60
    tr_n=[0]
    pr_n=[0]
    def tstamp():
        if o.probe==pr_n[0]:
            a("s_memrealtime s[82:83]"); a("s_waitcnt lgkmcnt(0)"); e.lg_done=e.lg_n
        pr_n[0]+=1
        if not o.trace: return
        a("s_memtime s[98:99]"); a("s_waitcnt lgkmcnt(0)"); e.lg_done=e.lg_n
        a(f"v_writelane_b32 v{VTR}, s98, {tr_n[0]}"); tr_n[0]+=1
        assert tr_n[0]<59
    a("s_cmp_ge_u32 s2, 256")
    a("s_cbranch_scc1 L_done")
    if o.twice:
        a("s_mov_b32 s85, 0"); a("v_mov_b32 v254, v0")
        e.label("L_again")
        a("v_mov_b32 v0, v254")
    if o.stamps:
        a("s_memrealtime s[90:91]")
        a("s_memtime s[88:89]")
    if o.probe>=0:
        a("s_memrealtime s[84:85]"); a("s_memrealtime s[82:83]")
    a("s_load_dwordx2 s[12:13], s[0:1], 8")
    a("s_load_dwordx2 s[16:17], s[0:1], 16")
    a("s_load_dwordx2 s[20:21], s[0:1], 24")
    a("s_load_dwordx2 s[8:9], s[0:1], 0")
    a("s_load_dwordx2 s[4:5], s[0:1], 0")
    a("s_load_dwordx2 s[24:25], s[0:1], 32")
    a("v_lshrrev_b32 v1, 6, v0")
    a("v_and_b32 v2, 63, v0")
    a("s_lshr_b32 s29, s2, 3")
    a("v_readfirstlane_b32 s40, v1")
    if o.pretouch:
        a("s_getpc_b64 s[44:45]")
        e.label("L_pc")
        a("s_and_b32 s30, s29, 3")
        a("v_and_b32 v3, 15, v0")
        a("v_lshl_add_u32 v3, v1, 4, v3")
        a("s_lshl_b32 s30, s30, 6")
        a("v_add_u32 v3, s30, v3")
        a("v_lshlrev_b32 v3, 7, v3")
        a("v_min_u32 v3, L_fastend-L_pc, v3")
        a("s_mov_b64 exec, 0xffff")
        e.vmem("global_load_dword v255, v3, s[44:45]")
        a("s_mov_b64 exec, -1")
    a("s_and_b32 s28, s2, 7")
    a("s_and_b32 s30, s28, 1")
    a("s_lshl_b32 s30, s30, 5")
    a("s_add_u32 s29, s29, s30")
    a("s_cmp_eq_u32 s29, 63")
    a("s_cbranch_scc1 L_fin")
    a("s_mul_i32 s31, s29, 37")
    a("s_lshr_b32 s31, s31, 8")
    a("s_mul_i32 s30, s31, 7")
    a("s_sub_u32 s30, s29, s30")
    a("s_lshr_b32 s28, s28, 1")
    a("s_mul_i32 s28, s28, 9")
    a("s_add_u32 s31, s31, s28")
    a("s_and_b32 s41, s40, 1")
    a("s_lshr_b32 s42, s40, 1")
    for (d,sz) in ((8,2359296),(12,10616832),(16,9216),(20,9216),(24,18874368)):
        a(f"s_mov_b32 s{d+2}, {sz}"); a(f"s_mov_b32 s{d+3}, 0x20000")
    a("v_and_b32 v4, 15, v2")
    a("v_bfe_u32 v5, v2, 4, 1")
    a("v_lshrrev_b32 v6, 5, v2")
    a("v_lshlrev_b32 v7, 1, v5")
    a("v_add_u32 v7, v7, v6")
    a(f"v_mul_u32_u24 v7, {8*QROW}, v7")
    a(f"v_lshl_add_u32 v{VB}, v4, 4, v7")
    for j in range(1,8): a(f"v_add_u32 v{VB+j}, {j*QROW}, v{VB}")
    a("s_lshl_b32 s33, s31, 1")
    a("s_add_u32 s33, s33, s41")
    a("s_lshl_b32 s34, s33, 7")
    a("s_lshl_b32 s35, s33, 8")
    a(f"s_mul_i32 s36, s42, {32*QROW}")
    a("s_add_u32 s35, s35, s36")
    a(f"v_lshlrev_b32 v{VST}, 3, v4")
    a("v_lshrrev_b32 v7, 3, v0")
    a(f"v_mul_u32_u24 v{VA}, {XROW}, v7")
    a("v_lshrrev_b32 v7, 1, v7")
    a("v_xor_b32 v7, v7, v0")
    a("v_and_b32 v7, 7, v7")
    a(f"v_lshl_add_u32 v{VA}, v7, 4, v{VA}")
    a(f"s_mul_i32 s{SA}, s30, {288*XROW}")
    for b in range(1,10): a(f"s_add_u32 s{SA+b}, s{SA}, {32*b*XROW}")
    a("s_cmp_eq_u32 s30, 6")
    a("s_cselect_b32 s6, 2359296, 0")
    a("s_mov_b32 s7, 0x20000")
    a("s_lshl_b32 s43, s40, 10")
    a("s_waitcnt lgkmcnt(0)")
    if o.probe==100:
        a("s_memrealtime s[82:83]"); a("s_waitcnt lgkmcnt(0)")
    iS=e.vmem(f"buffer_load_dwordx2 v[{AF+8}:{AF+9}], v{VST}, s[16:19], s34 offen",[],R("v",AF+8,2))
    iZ=e.vmem(f"buffer_load_dwordx2 v[{AF+10}:{AF+11}], v{VST}, s[20:23], s34 offen",[],R("v",AF+10,2))

    order=[(rb,c) for c in range(9) for rb in range(R1)]+[(b,c) for b in range(R1,10) for c in range(9)]
    NFR=2*len(order)
    VL=[]
    for c in range(9):
        A_=[("A",(rb,c)) for rb in range(R1)]; B_=[("B",c,j) for j in range(8)]
        VL+= (B_+A_) if c<o.bfirst else (A_+B_)
    VL+=[("A",(b,c)) for b in range(R1,10) for c in range(9)]
    st=dict(VL=VL, free=list(range(NPOOL)), slot={}, dma={}, rel=[], nbar=0, ok=set(), bbusy=set(), Bidx={},
            nrd=0, fidx={}, step=-1, busy={}, m0=None, lastv=-99,
            jobs=[], cur=None, DW=[], JQ=[], SQ=[], jk=0, xi={}, wl=None, lastst=-99, lastdw=-99, pkbusy={}, done_at={})
    def v_ok(it):
        if e.vm_n-e.vm_done>=60: return False
        if it[0]=="B": return (it[1]%NB,it[2]) not in st["bbusy"]
        c=it[1][1]
        return any(s_>0 or c==0 for s_ in st["free"])
    def v_pick():
        VL=st["VL"]
        if not VL: return None
        if v_ok(VL[0]): return 0
        if o.bypass and VL[0][0]=="B" and len(st["free"])>o.bypass:
            for i,it in enumerate(VL):
                if it[0]=="A" and it[1][0]>=R1: return i if v_ok(it) else None
        return None
    def v_m0(i):
        u=st["VL"][i][1]; c=u[1]
        sl=[s_ for s_ in st["free"] if s_>0 or c==0][0]
        st["free"].remove(sl); st["slot"][u]=sl
        e.op(f"s_add_u32 m0, s43, {sl*4096-128*c}","m0w")
        st["m0"]=u; del st["VL"][i]
    def v_dma():
        u=st["m0"]; b,c=u; st["m0"]=None
        st["dma"][u]=e.vmem(f"buffer_load_dwordx4 v{VA}, {'s[4:7]' if b==9 else 's[8:11]'}, s{SA+b} offen offset:{128*c} lds",[f"v{VA}"],[],"dma")
    def v_b(i):
        _,c,j=st["VL"][i]; del st["VL"][i]
        r=RAW+32*(c%NB)+4*j
        st["bbusy"].add((c%NB,j))
        st["Bidx"][(c,j)]=e.vmem(f"buffer_load_dwordx4 v[{r}:{r+3}], v{VB+j}, s[12:15], s35 offen",[f"v{VB+j}"],R("v",r,4))
        if j==7 and c<8: a(f"s_add_u32 s35, s35, {64*QROW}")
    def vpump(mid=None):
        i=v_pick()
        if i is None: return False
        if st["VL"][i][0]=="A":
            v_m0(i)
            if mid: mid()
            v_dma()
        else: v_b(i)
        st["lastv"]=e.slots
        return True
    for _ in range(o.p0): assert vpump()
    PRE=[]
    p=PRE.append
    p("v_and_b32 v3, 31, v2")
    p("s_lshl_b32 s36, s42, 4")
    p("v_xor_b32 v3, s36, v3")
    p("v_bfe_u32 v7, v3, 1, 3")
    p("s_lshl_b32 s36, s42, 2")
    p("v_add_u32 v0, s36, v6")
    p("v_xor_b32 v7, v7, v0")
    p("v_lshlrev_b32 v3, 7, v3")
    p(f"v_lshl_add_u32 v{VRD}, v7, 4, v3")
    p(f"v_xor_b32 v{VRD+1}, 32, v{VRD}")
    p(f"v_add_u32 v{VRD+2}, 0x10000, v{VRD}")
    p(f"v_add_u32 v{VRD+3}, 0x10000, v{VRD+1}")
    p("s_lshl_b32 s36, s40, 12")
    p("s_add_u32 s36, s36, 0x20000")
    p(f"v_lshl_add_u32 v{VXW}, v2, 4, s36")
    p(f"v_xor_b32 v{VXR}, 0x2000, v{VXW}")
    p("s_mul_i32 s36, s30, 288")
    p("s_lshl_b32 s37, s42, 4")
    p("s_add_u32 s36, s36, s37")
    p("v_lshl_add_u32 v3, v6, 2, s36")
    p(f"v_mul_u32_u24 v3, {OROW}, v3")
    p(f"v_lshl_add_u32 v{VST}, v5, 2, v{VST}")
    p(f"v_add3_u32 v{VST}, v{VST}, v3, s34")
    for r in range(8): p(f"s_mov_b32 s{SROW+r}, {(8*(r>>2)+(r&3))*OROW}")
    p(f"v_mov_b32 v{VOR}, 0"); p(f"v_mov_b32 v{VOR+1}, 0")
    p("s_mov_b32 s37, 0x4b800000")
    p("s_mov_b32 s38, 0xffff0000")
    p("s_mov_b64 s[46:47], 0")
    p("s_mov_b32 s68, 0x41000000")
    p("s_mov_b32 s69, 0x41800000")
    p("s_mov_b32 s70, 0x0dffffff")
    p("s_mov_b32 s71, 0x7fffffff")
    p("s_mov_b32 s72, 0x71800000")
    p(None)
    S=AF; Z=AF+4
    for i in range(4):
        sr=AF+8+(i>>1); zr=AF+10+(i>>1)
        if i&1:
            p(f"v_and_b32 v{S+i}, s38, v{sr}"); p(f"v_and_b32 v{Z+i}, s38, v{zr}")
        else:
            p(f"v_lshlrev_b32 v{S+i}, 16, v{sr}"); p(f"v_lshlrev_b32 v{Z+i}, 16, v{zr}")
        p(f"v_mul_f32 v{CP+i}, -v{Z+i}, v{S+i}")
        p(f"v_mul_f32 v{SP+i}, s37, v{S+i}")
    for i in range(4):
        p(f"v_mul_f32 v3, s68, v{Z+i}")
        p("v_rndne_f32 v7, v3")
        p("v_cmp_neq_f32 vcc, v3, v7")
        p("s_or_b64 s[46:47], s[46:47], vcc")
        p(f"v_cmp_nle_f32 vcc, |v{Z+i}|, s69")
        p("s_or_b64 s[46:47], s[46:47], vcc")
        p(f"v_and_b32 v3, s71, v{Z+i}")
        p("v_add_u32 v3, -1, v3")
        p("v_cmp_gt_u32 vcc, s70, v3")
        p("s_or_b64 s[46:47], s[46:47], vcc")
        p(f"v_and_b32 v3, s71, v{S+i}")
        p("v_cmp_le_u32 vcc, s72, v3")
        p("s_or_b64 s[46:47], s[46:47], vcc")
        p("v_add_u32 v3, -1, v3")
        p("v_cmp_gt_u32 vcc, s70, v3")
        p("s_or_b64 s[46:47], s[46:47], vcc")
    for t in PRE:
        if t is None:
            e.wait(vm=iZ)
            for g in R("v",AF+8,4): e.pend.pop(g,None)
        else: a(t)
        if e.slots-st["lastv"]>=o.vi0: vpump()
    tstamp()
    e.l.append("    .p2align 3"); e.label("L_p1"); e.off=0
    e.l.append(";P1")

    def barrier(need_units, lg=None):
        w=-1
        for u in need_units:
            assert u in st["dma"], f"unit {u} not issued before barrier {st['nbar']}"
            w=max(w,st["dma"][u])
        e.wait(vm=w if w>=0 else None, lg=lg)
        a("s_barrier")
        st["nbar"]+=1
        st["ok"]|=set(need_units)
        for u in st["rel"]: st["free"].append(st["slot"][u])
        st["rel"]=[]
    def rpump(n):
        k=0
        while k<n:
            f=st["nrd"]
            if f>=NFR or f>(st["step"]-1)//2+NF: break
            u=order[f//2]; ts=f&1
            if u not in st["ok"]: break
            sl=st["slot"][u]; dst=AF+4*(f%NF)
            st["fidx"][f]=e.ds(f"ds_read_b128 v[{dst}:{dst+3}], v{VRD+ts+2*(sl>>4)} offset:{(sl&15)*4096}",[f"v{VRD+ts+2*(sl>>4)}"],R("v",dst,4))
            st["nrd"]+=1; k+=1
        return k
    def mfma():
        s_=st["step"]+1; st["step"]=s_
        f=s_//2; cb=s_&1; (b,c)=order[f//2]; ts=f&1
        assert f in st["fidx"], f"fragment {f} of unit {(b,c)} not read at step {s_}"
        e.wait(lg=st["fidx"][f])
        af=AF+4*(f%NF)
        p_,base=accloc(b); base+=16*cb
        acc=R(p_,base,16); first=(c==0 and ts==0)
        if first:
            assert st["busy"].get((p_,base)) is None, f"acc {p_}{base} still busy with block {st['busy'].get((p_,base))} at block {b}"
            st["busy"][(p_,base)]=b
        bb=16*c+8*ts+4*cb
        e.op(f"v_mfma_f32_32x32x16_bf16 {rng(p_,base,16)}, v[{af}:{af+3}], a[{bb}:{bb+3}], {'0' if first else rng(p_,base,16)}",
             "mfma",R("v",af,4)+R("a",bb,4),acc,[] if first else acc)
        if ts==1 and cb==0: st["rel"].append((b,c))
        if c==8 and ts==1 and cb==1: st["jobs"].append(b); st["done_at"][b]=s_
    def emit(it):
        k=it[0]
        if k=="v": e.valu(it[1],it[2],it[3])
        elif k=="perm": e.op(f"v_permlane16_swap_b32_ex v{it[1]}, v{it[2]}","perm",[f"v{it[1]}",f"v{it[2]}"],[f"v{it[1]}",f"v{it[2]}"])
        elif k=="wb": e.wait(vm=st["Bidx"][it[1]])
        elif k=="bfree":
            st["bbusy"].discard(it[1])
        elif k=="bar1":
            tstamp()
            barrier([(rb,it[1]) for rb in range(R1)])
        elif k=="dw":
            st["wl"]=e.ds(f"ds_write_b128 v{VXW}, {rng(it[1],it[2],4)} offset:{it[3]}",[f"v{VXW}"]+R(it[1],it[2],4),[],"wst")
        elif k=="xr":
            i=it[1]; st["xi"][i]=e.ds(f"ds_read_b128 v[{XR+4*i}:{XR+4*i+3}], v{VXR} offset:{it[2]}",[f"v{VXR}"],R("v",XR+4*i,4))
        elif k=="wx": e.wait(lg=st["xi"][it[1]])
        elif k=="afree":
            st["busy"][(it[1],it[2])]=None; st["busy"][(it[1],it[2]+16)]=None
        elif k=="pk":
            while st["pkbusy"].get(it[1]): emit(st["SQ"].pop(0))
            st["pkbusy"][it[1]]=True
        elif k=="pkfree": st["pkbusy"][it[1]]=False
        elif k=="sq": st["SQ"]+=it[1]
        elif k=="st":
            e.vmem(f"buffer_store_dword v{it[1]}, v{VSTT}, s[24:27], s{SROW+it[2]} offen {stmod}",[f"v{it[1]}",f"v{VSTT}"])
        else: raise Exception(k)
    def dq_list(c):
        rb_=RAW+32*(c%NB); L=[]
        def V(t,r,w): L.append(("v",t,r,w))
        L.append(("wb",(c,1)))
        bpos=o.bpos0 if c==0 else o.bpos
        if bpos==0: L.append(("bar1",c))
        for jp in range(4):
            for ee in range(4):
                k=ee&1; x=rb_+8*jp+ee; y=x+4
                V(f"v_or3_b32 v{VOR+k}, v{VOR+k}, v{x}, v{y}",[f"v{VOR+k}",f"v{x}",f"v{y}"],[f"v{VOR+k}"])
                V(f"v_fma_mix_f32 v{x}, v{x}, v{SP+ee}, v{CP+ee} op_sel_hi:[1,0,0]",[f"v{x}"],[f"v{x}"])
                V(f"v_fma_mix_f32 v{y}, v{y}, v{SP+ee}, v{CP+ee} op_sel_hi:[1,0,0]",[f"v{y}"],[f"v{y}"])
            for ee in (0,2,1,3):
                x=rb_+8*jp+ee; y=x+4
                V(f"v_cvt_pk_bf16_f32 v{x}, v{x}, v{y}",[f"v{x}",f"v{y}"],[f"v{x}"])
            L.append(("bfree",(c%NB,2*jp+1)))
            x=rb_+8*jp
            def AW(ee):
                d=16*c+4*(ee&1)+8*(ee>>1)+jp
                V(f"v_accvgpr_write_b32 a{d}, v{x+ee}",[f"v{x+ee}"],[f"a{d}"])
            L.append(("perm",x,x+2)); AW(0)
            if jp<3: L.append(("wb",(c,2*jp+3)))
            L.append(("perm",x+1,x+3)); AW(2); AW(1); AW(3)
            L.append(("bfree",(c%NB,2*jp)))
            if bpos==jp+1: L.append(("bar1",c))
        return L

    for s_ in range(9):
        L=dq_list(s_)
        M=4*R1 if s_>0 else 0
        def fill(n):
            t0=e.slots
            while L and e.slots-t0<n:
                if e.slots-st["lastv"]>=o.vi:
                    vpump(mid=(lambda: emit(L.pop(0))) if L[0][0]=="v" else None)
                    if not L: break
                emit(L.pop(0))
                rpump(1)
        if M==0: fill(10**6)
        else:
            tot=100+11*2//1
            for m in range(M):
                fill(o.q1 if o.q1 else max(6,(100+8+2*R1+2*R1)//M))
                mfma(); rpump(1)
            fill(10**6)
    tstamp()

    e.l.append(";P2")
    S2=36*R1
    XS=o.xs; YS=o.xs+18
    def bar_steps():
        L=[S2-4*R1+o.zs]
        for b in range(R1,10): L+=[S2+36*(b-R1)+XS, S2+36*(b-R1)+YS]
        return L
    BS=bar_steps()
    def job_start():
        b=st["jobs"].pop(0); st["cur"]=b
        p_,base=accloc(b); off=16384*(st["jk"]&1)
        st["DW"]=[("dw",p_,base+16*(i>>1)+8+4*(i&1),off+1024*i) for i in range(4)]
    def job_post(G):
        b=st["cur"]; st["cur"]=None
        p_,base=accloc(b); off=16384*(st["jk"]&1); pk=st["jk"]%4; st["jk"]+=1
        P=PK+8*pk; L=[]
        for i in (0,2,1,3): L.append((G,("xr",i,off+1024*i)))
        if p_=="a":
            K=[TT,TT+8]
            for h in range(2):
                for cb in range(2):
                    for r in range(4*h,4*h+4):
                        L.append((G,("v",f"v_accvgpr_read_b32 v{TT+8*cb+r}, a{base+16*cb+r}",[f"a{base+16*cb+r}"],[f"v{TT+8*cb+r}"])))
        else: K=[base,base+16]
        G2=G+o.jd
        L.append((G2,("pk",pk)))
        for h in range(2):
            for cb in range(2):
                i=2*cb+h
                L.append((G2,("wx",i)))
                for q in range(4):
                    k=K[cb]+4*h+q; x=XR+4*i+q
                    L.append((G2,("v",f"v_add_f32_ex v{k}, v{k}, v{x}",[f"v{k}",f"v{x}"],[f"v{k}"])))
            for r in range(4*h,4*h+4):
                L.append((G2,("v",f"v_cvt_pk_bf16_f32 v{P+r}, v{K[0]+r}, v{K[1]+r}",[f"v{K[0]+r}",f"v{K[1]+r}"],[f"v{P+r}"])))
            SL=[]
            if h==0: SL.append(("v",f"v_add_u32 v{VSTT}, {32*b*OROW if b else '0x0'}, v{VST}" if b else f"v_mov_b32_ex v{VSTT}, v{VST}",[f"v{VST}"],[f"v{VSTT}"]))
            SL+=[("st",P+r,r) for r in range(4*h,4*h+4)]
            if h==1: SL.append(("pkfree",pk))
            L.append((G2,("sq",SL)))
        L.append((G2,("afree",p_,base)))
        st["JQ"]+=L
    def light(G,t_end):
        while st["JQ"] and st["JQ"][0][0]<=G and e.slots<t_end: emit(st["JQ"].pop(0)[1])
    def one_light(G):
        t0=e.slots
        while st["JQ"] and st["JQ"][0][0]<=G and e.slots==t0: emit(st["JQ"].pop(0)[1])
    def gap():
        mfma()
        G=st["step"]; t_end=e.slots+o.nf-(1 if G&1 else 0)
        nr=rpump(o.rmax)
        if st["cur"] is None and st["jobs"] and G>=st["done_at"][st["jobs"][0]]+o.wx: job_start()
        heavy=0
        if st["DW"] and G-st["lastdw"]>=o.dg and (nr==0 or o.dg==1):
            emit(st["DW"].pop(0)); st["lastdw"]=G; heavy+=1
        if heavy<o.hv and e.slots-st["lastv"]>=o.vi2 and vpump(mid=lambda: one_light(G)): heavy+=1
        while st["SQ"] and st["SQ"][0][0]!="st": emit(st["SQ"].pop(0))
        if heavy<o.hv and st["SQ"] and G-st["lastst"]>=o.sg:
            emit(st["SQ"].pop(0)); st["lastst"]=G; heavy+=1
            while st["SQ"] and st["SQ"][0][0]=="pkfree": emit(st["SQ"].pop(0))
        light(G,t_end)
        if G in BS:
            i=BS.index(G); nxt=BS[i+1] if i+1<len(BS) else 10**6
            fmax=min(NFR-1,(nxt-1)//2+NF)
            need=[u for u in order[:fmax//2+1] if u not in st["ok"]]
            serve=st["cur"] is not None and not st["DW"]
            if serve:
                while st["JQ"]: emit(st["JQ"].pop(0)[1])
            tstamp()
            barrier(need, lg=st["wl"] if serve else None)
            if serve: job_post(G)
    def tail():
        if o.probe==102: a("s_memrealtime s[82:83]"); a("s_waitcnt lgkmcnt(0)"); e.lg_done=e.lg_n
        while st["JQ"]: emit(st["JQ"].pop(0)[1])
        fs=st["free"][0]
        e.valu(f"v_or_b32_e32 v{VOR}, v{VOR}, v{VOR+1}",[],[])
        a(f"v_cmp_lt_u32_e32 vcc, 15, v{VOR}")
        a("s_or_b64 s[48:49], s[46:47], vcc")
        a("s_cmp_lg_u64 s[48:49], 0")
        a("s_cselect_b32 s36, 1, 0")
        a(f"v_lshlrev_b32_e32 v3, 2, v1"); a("v_mov_b32_e32 v4, s36")
        a(f"v_add_u32_e32 v3, {fs*4096}, v3"); a(f"v_mov_b32_e32 v5, {fs*4096}")
        e.ds("ds_write_b32 v3, v4")
        first=True
        while st["jobs"] or st["cur"] is not None:
            if st["cur"] is None: job_start()
            while st["DW"]:
                emit(st["DW"].pop(0))
                if st["SQ"]: emit(st["SQ"].pop(0))
            w=e.lg_n-1
            while st["SQ"]: emit(st["SQ"].pop(0))
            barrier([],lg=w)
            job_post(0)
            for _ in range(4): emit(st["JQ"].pop(0)[1])
            if first:
                fl=e.ds("ds_read_b128 v[4:7], v5",[],R("v",4,4)); first=False
            while st["JQ"]:
                emit(st["JQ"].pop(0)[1])
                while st["SQ"]: emit(st["SQ"].pop(0))
        e.wait(lg=fl)
        e.valu("v_or3_b32 v4, v4, v5, v6",R("v",4,4),["v4"])
        a("v_or_b32_e32 v4, v4, v7")
        a("s_nop 0")
        a("v_readfirstlane_b32_e32 s36, v4")
        tstamp()
        a("s_cmp_lg_u32 s36, 0")
        a("s_cbranch_scc1 L_slow")
    while st["step"]<36*9-1: gap()
    a("s_cmp_eq_u32 s30, 6")
    a("s_cbranch_scc1 L_ten")
    sv=(e.fork(), copy.deepcopy(st), tr_n[0], pr_n[0])
    tail()
    a("s_branch L_fin")
    e.restore(sv[0]); st.clear(); st.update(sv[1]); tr_n[0]=sv[2]; pr_n[0]=sv[3]
    e.label("L_ten")
    while st["step"]<36*10-1: gap()
    tail()
    if not o.abl:
        e.l.append(f".if (.-L_p1) != {e.off}\n.error \"size model mismatch\"\n.endif")
    e.label("L_fin")
    if o.probe>=0:
        a("s_waitcnt vmcnt(0) lgkmcnt(0)")
        if o.probe==101: a("s_memrealtime s[82:83]"); a("s_waitcnt lgkmcnt(0)")
        a("s_sub_u32 s82, s82, s84"); a("s_add_u32 s82, s82, 3000")
        e.label("L_spin")
        a("s_memrealtime s[80:81]"); a("s_waitcnt lgkmcnt(0)"); a("s_sub_u32 s80, s80, s84"); a("s_cmp_lt_u32 s80, s82"); a("s_cbranch_scc1 L_spin")
    if o.twice:
        a("s_waitcnt vmcnt(0) lgkmcnt(0)"); a("s_barrier")
        a("s_add_u32 s85, s85, 1"); a("s_cmp_eq_u32 s85, 1"); a("s_cbranch_scc1 L_again")
    if o.trace:
        a("s_load_dwordx2 s[92:93], s[0:1], 48"); a("s_mov_b32 s94, 0x1000000"); a("s_mov_b32 s95, 0x20000"); a("s_waitcnt lgkmcnt(0)")
        a("s_lshl_b32 s98, s2, 3"); a("s_add_u32 s98, s98, s40"); a("s_lshl_b32 s98, s98, 8"); a("s_add_u32 s98, s98, 65536")
        a("v_lshlrev_b32 v4, 2, v2")
        a(f"v_writelane_b32 v{VTR}, s88, 59")
        a(f"buffer_store_dword v{VTR}, v4, s[92:95], s98 offen")
    if o.stamps:
        a("s_load_dwordx2 s[92:93], s[0:1], 48")
        a("s_waitcnt vmcnt(0)")
        a("s_barrier")
        a("s_cmp_lg_u32 s40, 0"); a("s_cbranch_scc1 L_done")
        a("s_memrealtime s[96:97]")
        a("s_memtime s[86:87]")
        a("s_mov_b32 s94, 65536"); a("s_mov_b32 s95, 0x20000")
        a("s_waitcnt lgkmcnt(0)")
        a("v_mov_b32 v10, s90"); a("v_mov_b32 v11, s91"); a("v_mov_b32 v12, s96"); a("v_mov_b32 v13, s97")
        a("s_lshl_b32 s98, s2, 5"); a("v_mov_b32 v14, 0")
        a("buffer_store_dwordx4 v[10:13], v14, s[92:95], s98 offen")
        a("s_sub_u32 s86, s86, s88"); a("s_subb_u32 s87, s87, s89")
        a("v_mov_b32 v10, s86"); a("v_mov_b32 v11, s87")
        a("buffer_store_dwordx2 v[10:11], v14, s[92:95], s98 offen offset:16")
    e.label("L_fastend")
    a("s_endpgm")

    e.label("L_slow")
    ACA=32
    a("s_waitcnt vmcnt(0) lgkmcnt(0)")
    a("s_setreg_imm32_b32 hwreg(HW_REG_MODE, 4, 2), 3")
    a("v_and_b32 v3, 31, v2")
    a("v_lshrrev_b32 v4, 5, v2")
    a(f"v_mul_u32_u24 v5, {8*QROW}, v4")
    a("v_lshl_add_u32 v5, v3, 2, v5")
    a("v_lshlrev_b32 v6, 1, v3")
    a("s_lshl_b32 s36, s42, 4")
    a("v_xor_b32 v10, s36, v3")
    a(f"v_mul_u32_u24 v10, {XROW}, v10")
    a("v_lshl_add_u32 v10, v4, 4, v10")
    a("s_mul_i32 s37, s30, 288")
    a("s_add_u32 s36, s36, s37")
    a("v_lshl_add_u32 v7, v4, 2, s36")
    a(f"v_mul_u32_u24 v7, {OROW}, v7")
    a("v_add_u32 v7, v7, v6")
    a("s_mov_b32 s38, 0xffff0000")
    a("s_cmp_eq_u32 s30, 6")
    a("s_cselect_b32 s75, 10, 9")
    a("s_mov_b32 s73, 0")
    e.label("L_s1")
    a("s_lshl_b32 s76, s73, 6")
    a("s_add_u32 s76, s76, s34")
    a("buffer_load_ushort v8, v6, s[16:19], s76 offen")
    a("buffer_load_ushort v9, v6, s[20:23], s76 offen")
    a("s_mov_b32 s74, 0")
    a("s_waitcnt vmcnt(0)")
    a("v_lshlrev_b32 v8, 16, v8")
    a("v_lshlrev_b32 v9, 16, v9")
    e.label("L_s2")
    a("s_lshl_b32 s77, s76, 1")
    a(f"s_mul_i32 s78, s74, {32*XROW}")
    a(f"s_add_u32 s78, s78, s{SA}")
    for r in range(16): a(f"v_mov_b32 v{ACA+r}, 0")
    a("s_mov_b32 s79, 0")
    e.label("L_s3")
    for j in range(8):
        a(f"s_add_u32 s80, s77, {j*QROW}")
        a(f"buffer_load_dword v{16+j}, v5, s[12:15], s80 offen")
    a("buffer_load_dwordx4 v[28:31], v10, s[8:11], s78 offen")
    a(f"s_add_u32 s77, s77, {16*QROW}")
    a("s_add_u32 s78, s78, 32")
    a("s_waitcnt vmcnt(0)")
    for jp in range(4):
        x=16+2*jp; y=x+1
        a(f"v_cvt_f32_i32 v{x}, v{x}"); a(f"v_cvt_f32_i32 v{y}, v{y}")
        a(f"v_cvt_pk_bf16_f32 v{y}, v{x}, v{y}")
        a(f"v_lshlrev_b32 v{x}, 16, v{y}"); a(f"v_and_b32 v{y}, s38, v{y}")
        a(f"v_sub_f32 v{x}, v{x}, v9"); a(f"v_sub_f32 v{y}, v{y}, v9")
        a(f"v_cvt_pk_bf16_f32 v{y}, v{x}, v{y}")
        a(f"v_lshlrev_b32 v{x}, 16, v{y}"); a(f"v_and_b32 v{y}, s38, v{y}")
        a(f"v_mul_f32 v{x}, v{x}, v8"); a(f"v_mul_f32 v{y}, v{y}, v8")
        a(f"v_cvt_pk_bf16_f32 v{24+jp}, v{x}, v{y}")
    a("s_add_u32 s79, s79, 1")
    a("s_cmp_lg_u32 s79, 36")
    a(f"v_mfma_f32_32x32x16_bf16 v[{ACA}:{ACA+15}], v[28:31], v[24:27], v[{ACA}:{ACA+15}]")
    a("s_cbranch_scc1 L_s3")
    a(f"s_mul_i32 s78, s74, {32*OROW}")
    a("s_add_u32 s78, s78, s76")
    a("s_nop 7"); a("s_nop 7")
    for r in range(8):
        a(f"v_cvt_pk_bf16_f32 v{ACA+r}, v{ACA+r}, v{ACA+r}")
        a(f"s_add_u32 s80, s78, s{SROW+r}")
        a(f"buffer_store_short v{ACA+r}, v7, s[24:27], s80 offen")
    a("s_add_u32 s74, s74, 1")
    a("s_cmp_lg_u32 s74, s75")
    a("s_cbranch_scc1 L_s2")
    a("s_add_u32 s73, s73, 1")
    a("s_cmp_lg_u32 s73, 2")
    a("s_cbranch_scc1 L_s1")
    a("s_branch L_fin")
    e.label("L_done")
    if o.abl:
        pats=dict(rd=r"ds_read_b128 v\[\d+:\d+\], v(17|18|19|20) ", dma=r" lds$", st=r"buffer_store_dword v\d+, v24", bar=r"s_barrier",
                  xw=r"ds_write_b128", xr=r"ds_read_b128 v\[\d+:\d+\], v22", mf=r"v_mfma", va=r"v_(add_f32|cvt_pk|accvgpr|or3|fma_mix|perml)", bl=r"buffer_load_dwordx4 v\[", wv=r"s_waitcnt vmcnt\(\d+\)( lgkmcnt\(\d+\))?$")
        L=[]; ph=0
        for t in e.l:
            if t==";P1": ph=1
            if t==";P2": ph=2
            if t=="L_fin:": ph=3
            drop=False
            for f in o.abl.split(","):
                if int(f[0])==ph and re.search(pats[f[1:]],t): drop=True
            if not drop: L.append(t)
        e.l=L
    body=e.text()
    return f"""; W4A16 GEMM (dequant fused). Generated by gen5.py
; @launch grid=(256,1,1) block=(256,1,1) lds={LDS_TOTAL}
.amdgcn_target "amdgcn-amd-amdhsa--gfx950"
.text
.globl {KN}
.p2align 8
.type {KN},@function
{KN}:
{body}    s_endpgm
.section .rodata,"a"
.p2align 6
.amdhsa_kernel {KN}
  .amdhsa_next_free_vgpr 512
  .amdhsa_next_free_sgpr 102
  .amdhsa_accum_offset 256
  .amdhsa_group_segment_fixed_size 0
  .amdhsa_kernarg_size 56
  .amdhsa_user_sgpr_count 2
  .amdhsa_user_sgpr_kernarg_segment_ptr 1
  .amdhsa_system_sgpr_workgroup_id_x 1
.end_amdhsa_kernel
""", LDS_TOTAL
if __name__=="__main__":
    ap=argparse.ArgumentParser()
    ap.add_argument("out"); ap.add_argument("--stmod",default="sc1")
    ap.add_argument("--stamps",action="store_true"); ap.add_argument("--trace",action="store_true")
    ap.add_argument("--twice",action="store_true"); ap.add_argument("--abl",default="")
    for k,d in dict(r1=3,nb=4,nfr=5,xs=9,zs=2,wx=2,jd=4,nf=6,hv=1,sg=2,dg=2,rmax=1,vi=8,vi0=8,vi2=12,p0=22,bfirst=1,bpos=0,bpos0=3,q1=0,bypass=0,pretouch=1,probe=-1).items():
        ap.add_argument("--"+k,type=int,default=d)
    x=ap.parse_args()
    t,l=gen(x)
    open(x.out,"w").write(t); print("lds",l)
```
